```python
import torch

def _softmax(x, axis=-1):
    return torch.softmax(x, dim=axis)
def _gelu(x):
    return torch.nn.functional.gelu(x, approximate="tanh")
def _silu(x):
    return torch.nn.functional.silu(x)
def _sigmoid(x):
    return torch.sigmoid(x)
def _layernorm(x, axis=-1, eps=1e-5):
    m = x.mean(dim=axis, keepdim=True)
    v = x.var(dim=axis, keepdim=True, unbiased=False)
    return (x - m) / torch.sqrt(v + eps)
def _scatter_add(tgt, idx, src, axis=0):
    return tgt.clone().index_add_(axis, idx, src)
def _segment_sum(src, seg, n):
    out = torch.zeros((n,) + src.shape[1:], dtype=src.dtype)
    return out.index_add_(0, seg, src)
def _pad(x, pw):
    flat = tuple(v for pair in reversed(pw) for v in pair)
    return torch.nn.functional.pad(x, flat)

kernel_name = 'gated_mix__mha_block__glu_gated_bilinear__prompt'

def setup_inputs():

    _w = (lambda a: (lambda t: t.to(torch.bfloat16) if t.is_floating_point() else t)(torch.as_tensor(a)))
    def _A_setup():
        B, S, D, H = 1, 2048, 512, 32
        return {
            "x": _w((lambda *s: torch.randn(*s, dtype=torch.bfloat16) * 0.05)(B, S, D)),
            "wqkv": _w((lambda *s: torch.randn(*s, dtype=torch.bfloat16) * 0.8)(D, 3 * D)),
            "wo": _w((lambda *s: torch.randn(*s, dtype=torch.bfloat16) * 0.05)(D, D)),
        }
    _A_in = _A_setup()

    def _B_setup():
        B, S, D, F = 1, 2048, 512, 1792
        return {
            "x": _w((lambda *s: torch.randn(*s, dtype=torch.bfloat16) * 0.05)(B, S, D)),
            "w_gate": _w((lambda *s: torch.randn(*s, dtype=torch.bfloat16) * 1.6)(D, F) * (D ** -0.5)),
            "w_up": _w((lambda *s: torch.randn(*s, dtype=torch.bfloat16) * 1.6)(D, F) * (D ** -0.5)),
            "w_down": _w((lambda *s: torch.randn(*s, dtype=torch.bfloat16) * 1.6)(F, D) * (F ** -0.5)),
        }
    _B_in = _B_setup()

    return {
        "A_x": _A_in["x"],
        "A_wqkv": _A_in["wqkv"],
        "A_wo": _A_in["wo"],
        "B_x": _B_in["x"],
        "B_w_gate": _B_in["w_gate"],
        "B_w_up": _B_in["w_up"],
        "B_w_down": _B_in["w_down"],
        "gate_w": _w((lambda *s: torch.randn(*s, dtype=torch.bfloat16) * 0.05)(512) * 16.0),
    }

def reference(A_x, A_wqkv, A_wo, B_x, B_w_gate, B_w_up, B_w_down, gate_w):
    def _A_ref(x, wqkv, wo):
        B, S, D = x.shape
        H = 32
        Dh = D // H
        qkv = (lambda x, *d: x.permute(*d))((x @ wqkv).reshape(B, S, 3, H, Dh), 2, 0, 3, 1, 4)
        q, k, v = qkv[0], qkv[1], qkv[2]
        scores = torch.einsum("bhqd,bhkd->bhqk", q, k) * (Dh ** -0.5)
        p = _softmax(scores, axis=-1)
        o = torch.einsum("bhqk,bhkd->bhqd", p, v)
        return (lambda x, *d: x.permute(*d))(o, 0, 2, 1, 3).reshape(B, S, D) @ wo

    def _B_ref(x, w_gate, w_up, w_down):
        g = torch.einsum("bsd,df->bsf", x, w_gate)
        u = torch.einsum("bsd,df->bsf", x, w_up)
        h = g * u
        return torch.einsum("bsf,fd->bsd", h, w_down)

    x = A_x
    g = _sigmoid((x * gate_w).sum(-1, keepdims=True))
    a = _A_ref(x, A_wqkv, A_wo)
    b = _B_ref(x, B_w_gate, B_w_up, B_w_down)
    return g * a + (1 - g) * b
```

```python
import re

TRANS = ("v_exp_", "v_log_", "v_rcp_", "v_rsq_", "v_sqrt_", "v_sin_", "v_cos_")


def _split_ops(s):
    out, depth, cur = [], 0, ""
    for ch in s:
        if ch == "[":
            depth += 1
        elif ch == "]":
            depth -= 1
        if ch == "," and depth == 0:
            out.append(cur.strip())
            cur = ""
        else:
            cur += ch
    if cur.strip():
        out.append(cur.strip())
    return out


def _regs(op):
    op = op.strip()
    op = op.lstrip("-").strip("|")
    if op.startswith("abs(") or op.startswith("neg("):
        op = op[4:-1]
    m = re.fullmatch(r"([vs])(\d+)", op)
    if m:
        return {(m.group(1), int(m.group(2)))}
    m = re.fullmatch(r"([vs])\[(\d+):(\d+)\]", op)
    if m:
        return {(m.group(1), i) for i in range(int(m.group(2)), int(m.group(3)) + 1)}
    if op == "vcc":
        return {("s", 106), ("s", 107)}
    if op == "vcc_lo":
        return {("s", 106)}
    if op == "vcc_hi":
        return {("s", 107)}
    if op == "exec":
        return {("s", 126), ("s", 127)}
    if op == "exec_lo":
        return {("s", 126)}
    if op == "exec_hi":
        return {("s", 127)}
    if op == "m0":
        return {("s", 124)}
    return set()


class Ins:
    __slots__ = ("text", "mn", "dst", "src", "kind", "states", "srcc", "srcab", "sdata", "dpp", "passes", "wide")

    def __init__(self, text):
        self.text = text
        body = text.split(";")[0].strip()
        parts = body.split(None, 1)
        self.mn = mn = parts[0]
        rest = parts[1] if len(parts) > 1 else ""
        ops = _split_ops(rest)
        mods = ""
        if ops:
            last = ops[-1].split()
            ops[-1] = last[0] if last else ""
            mods = " ".join(last[1:])
        self.dst, self.src = set(), set()
        self.srcc, self.srcab, self.sdata = set(), set(), set()
        self.dpp = ("row_" in mods or "quad_perm" in mods or "wave_" in mods or "_dpp" in mn)
        self.states = 1
        self.passes = 0
        self.wide = False
        R = [_regs(o) for o in ops]
        if mn == "s_nop":
            self.kind = "nop"
            self.states = int(ops[0], 0) + 1
        elif mn.startswith("v_mfma"):
            self.kind = "mfma"
            self.passes = 8 if "32x32" in mn else 4
            self.dst = R[0]
            self.srcab = R[1] | R[2]
            self.srcc = R[3]
            self.src = self.srcab | self.srcc
        elif mn.startswith("v_"):
            self.kind = "trans" if mn.startswith(TRANS) else "valu"
            if "permlane" in mn and "swap" in mn:
                self.dst = R[0] | R[1]
                self.src = R[0] | R[1]
            elif mn.startswith("v_cmpx"):
                self.dst = _regs("exec")
                for r in R:
                    self.src |= r
            elif re.match(r"v_(add|sub|subrev|addc|subb|subbrev)_co_", mn) or mn.startswith("v_div_scale") or mn.startswith("v_mad_u64") or mn.startswith("v_mad_i64"):
                self.dst = R[0] | R[1]
                for r in R[2:]:
                    self.src |= r
            else:
                self.dst = R[0]
                for r in R[1:]:
                    self.src |= r
                if mn.startswith(("v_fmac", "v_mac", "v_pk_fmac", "v_dot2c", "v_writelane")) or self.dpp or "sdwa" in mn:
                    self.src |= R[0]
                if mn.startswith("v_cndmask") and len(ops) == 3:
                    self.src |= _regs("vcc")
        elif mn.startswith("ds_"):
            self.kind = "ds"
            if mn.startswith(("ds_read", "ds_bpermute", "ds_permute", "ds_swizzle")) or "_rtn" in mn:
                self.dst = R[0]
                for r in R[1:]:
                    self.src |= r
            else:
                for r in R:
                    self.src |= r
        elif mn.startswith(("buffer_", "global_")):
            self.kind = "vmem"
            lds = (" lds" in (" " + mods)) or "_lds_" in mn
            if lds:
                self.kind = "dma"
                for r in R:
                    self.src |= r
                self.src |= _regs("m0")
            elif "_load" in mn:
                self.dst = R[0]
                for r in R[1:]:
                    self.src |= r
                if "d16" in mn:
                    self.src |= R[0]
            elif "atomic" in mn and "sc0" in mods.split():
                self.dst = R[0]
                for r in R:
                    self.src |= r
            else:
                for r in R:
                    self.src |= r
                if "store" in mn:
                    self.sdata = R[0] if mn.startswith("buffer_") else R[1]
                    self.wide = mn.endswith(("x3", "x4"))
        elif mn.startswith("s_"):
            self.kind = "salu"
            if mn.startswith(("s_cmp", "s_waitcnt", "s_branch", "s_cbranch", "s_barrier", "s_setprio", "s_sleep", "s_endpgm", "s_bitcmp")):
                for r in R:
                    self.src |= r
            elif mn.startswith(("s_load", "s_buffer_load", "s_memtime", "s_memrealtime")):
                self.kind = "smem"
                self.dst = R[0]
                for r in R[1:]:
                    self.src |= r
            else:
                self.dst = R[0]
                for r in R[1:]:
                    self.src |= r
                if "saveexec" in mn:
                    self.dst |= _regs("exec")
        else:
            raise ValueError("unknown instruction " + text)


def need(p, c):
    n = 0
    pv = p.kind in ("valu", "trans")
    cv = c.kind in ("valu", "trans")
    vd = {r for r in p.dst if r[0] == "v"}
    sd = {r for r in p.dst if r[0] == "s"}
    if pv:
        if c.kind == "mfma" and vd & c.src:
            n = max(n, 2)
        if c.kind == "mfma" and sd & _regs("exec"):
            n = max(n, 4)
        if p.kind == "trans" and cv and c.kind != "trans" and vd & (c.src | c.dst):
            n = max(n, 1)
        if p.kind == "trans" and c.kind == "trans" and vd & c.src:
            n = max(n, 1)
        if cv and c.mn.startswith(("v_readfirstlane", "v_readlane")) and vd & c.src:
            n = max(n, 1)
        if cv and "permlane" in c.mn and vd & c.src:
            n = max(n, 2)
        if cv and c.dpp and vd & c.src:
            n = max(n, 2)
        if cv and c.dpp and sd & _regs("exec"):
            n = max(n, 5)
        if c.kind in ("vmem", "dma") and sd & c.src:
            n = max(n, 5)
        if cv and sd & c.src:
            n = max(n, 4 if c.mn.startswith(("v_readlane", "v_writelane")) else 2)
        if cv and sd & _regs("exec") and c.mn.startswith(("v_readlane", "v_writelane", "v_readfirstlane")):
            n = max(n, 4)
        if cv and sd & _regs("exec") and "permlane" in c.mn:
            n = max(n, 4)
        if ("sdwa" in p.mn or "op_sel" in p.text) and cv and vd & (c.src | c.dst):
            n = max(n, 1)
    if p.kind == "mfma":
        big = {8: 12, 4: 8}[p.passes]
        if c.kind == "mfma":
            if p.dst & c.srcab:
                n = max(n, big)
            if p.dst & c.srcc and not (p.dst == c.srcc and p.passes == c.passes):
                n = max(n, big - 2)
            if p.dst & c.dst and not (p.dst == c.srcc and p.passes == c.passes):
                n = max(n, big - 2)
        elif c.kind in ("valu", "trans", "ds", "vmem", "dma"):
            if p.dst & (c.src | c.dst):
                n = max(n, big)
            if cv and p.srcc & c.dst:
                n = max(n, {8: 7, 4: 3}[p.passes])
    if p.kind == "salu" and c.kind == "dma" and sd & _regs("m0"):
        n = max(n, 1)
    if p.kind == "vmem" and p.wide and p.sdata & c.dst:
        n = max(n, 2 if cv else 1)
    return n


class Asm:
    def __init__(self):
        self.items = []
        self.auto = True

    def raw(self, s):
        self.items.append(s)

    def label(self, name):
        self.items.append(name + ":")

    def __call__(self, text):
        for line in text.strip().split("\n"):
            line = line.strip()
            if not line:
                continue
            if line.startswith(";"):
                self.items.append("    " + line)
                continue
            if line.endswith(":"):
                self.items.append(line)
                continue
            ins = Ins(line)
            if self.auto:
                pad = self._pad(self.items, ins)
                while pad > 0:
                    k = min(pad, 16)
                    self.items.append(Ins(f"s_nop {k-1}"))
                    pad -= k
            self.items.append(ins)

    @staticmethod
    def _pad(items, ins):
        dist, pad = 0, 0
        for it in reversed(items):
            if isinstance(it, str):
                continue
            if dist >= 20:
                break
            n = need(it, ins)
            if n > dist:
                pad = max(pad, n - dist)
            dist += it.states
        return pad

    def check_edges(self):
        labels = {it[:-1]: i for i, it in enumerate(self.items) if isinstance(it, str) and it.endswith(":")}
        errs = []
        for i, it in enumerate(self.items):
            if isinstance(it, Ins) and it.mn.startswith(("s_branch", "s_cbranch")):
                tgt = it.text.split(";")[0].split()[1]
                if tgt not in labels:
                    continue
                pre = [x for x in self.items[max(0, i - 40): i + 1]]
                seq = list(pre)
                cnt = 0
                for x in self.items[labels[tgt]:]:
                    if isinstance(x, str):
                        continue
                    p = self._pad(seq, x)
                    if p > 0:
                        errs.append(f"edge hazard: branch '{it.text}' -> '{x.text}' needs {p} more")
                    seq.append(x)
                    cnt += x.states
                    if cnt > 20 or x.mn in ("s_branch", "s_endpgm"):
                        break
        return errs

    def text(self):
        out = []
        for it in self.items:
            out.append(it if isinstance(it, str) else "    " + it.text)
        return "\n".join(out) + "\n"
```

```python
from gen import *

KV_B = 0
X_B = 49152
W_B = 81920
W_SLOT = 14592
W_UP = 7296
PA_B = W_B + 5 * W_SLOT
PG_B = PA_B + 2048
K2_LDS = PG_B + 1024
DN_REG = 16384
K3_LDS = 4 * 16384


def gemm_tile_addr(a, vlane, vA0, vA1, vtmp, vtmp2, sbase):
    a(f"""
    v_bfe_u32 v{vtmp}, v{vlane}, 2, 2
    v_lshrrev_b32 v{vtmp2}, 5, v{vlane}
    v_lshl_add_u32 v{vA0}, v{vtmp2}, 2, v{vtmp}
    v_lshlrev_b32 v{vA0}, 7, v{vA0}
    v_lshrrev_b32 v{vtmp}, 1, v{vtmp}
    v_lshl_add_u32 v{vA0}, v{vtmp}, 6, v{vA0}
    v_bfe_u32 v{vtmp}, v{vlane}, 4, 1
    v_lshl_add_u32 v{vA0}, v{vtmp}, 5, v{vA0}
    v_and_b32 v{vtmp}, 3, v{vlane}
    v_lshl_add_u32 v{vA0}, v{vtmp}, 3, v{vA0}
    v_add_u32 v{vA0}, s{sbase}, v{vA0}
    v_xor_b32 v{vA1}, 64, v{vA0}
    """)


def gemm_dma_off(a, vlane, vO, vtmp, vtmp2, sct128):
    a(f"""
    v_lshrrev_b32 v{vtmp}, 3, v{vlane}
    v_bfe_u32 v{vtmp2}, v{vlane}, 4, 1
    v_lshlrev_b32 v{vtmp2}, 2, v{vtmp2}
    v_and_b32 v{vO}, 7, v{vlane}
    v_xor_b32 v{vO}, v{vO}, v{vtmp2}
    v_lshlrev_b32 v{vO}, 4, v{vO}
    v_lshl_add_u32 v{vO}, v{vtmp}, 10, v{vO}
    v_add_u32 v{vO}, s{sct128}, v{vO}
    """)


def gen_k2(a, opts):
    spin = int(opts.get("spin", 400))
    prio = int(opts.get("prio", 2))
    safe = int(opts.get("safe", 0))
    SAFE = "s_add_u32 s60, s60, 1\n s_cmp_gt_u32 s60, 0x40000\n s_cbranch_scc1 K2_END\n" if safe else ""
    a.raw(".globl k2_kernel\n.p2align 8\n.type k2_kernel,@function\nk2_kernel:")
    SWS, SX, SWT, SWD = 16, 20, 24, 28
    a(f"""
    s_cmp_ge_u32 s2, 0x100
    s_cbranch_scc1 K2_END
    s_load_dwordx2 s[4:5], s[0:1], 0
    s_load_dwordx4 s[8:11], s[0:1], 32
    s_load_dwordx2 s[12:13], s[0:1], 48
    s_load_dwordx2 s[14:15], s[0:1], 80
    v_lshrrev_b32 v1, 6, v0
    v_and_b32 v2, 63, v0
    v_readfirstlane_b32 s3, v1
    s_mov_b32 s60, 0
    s_and_b32 s32, s2, 7
    s_lshr_b32 s33, s2, 3
    s_and_b32 s34, s33, 3
    s_lshr_b32 s35, s33, 2
    v_lshlrev_b32 v1, 4, v2
    s_cmp_ge_u32 s3, 8
    s_cselect_b32 s36, 0, 1
    v_mov_b32 v3, s36
    v_lshlrev_b32 v4, 2, v0
    v_add_u32 v4, {PA_B}, v4
    ds_write_b32 v4, v3
    s_cbranch_scc1 K2_GEMM
    """)
    Q, KF_, VF_, S_, P_, O_ = 8, [12, 16], [20, 28], [36, 52], 68, 76
    vKa, vKn, vPr, vPw, vPv, vT = 3, 4, 5, 6, 7, 92
    a(f"""
    s_lshl_b32 s36, s32, 2
    s_add_u32 s36, s36, s34
    s_lshl_b32 s37, s35, 3
    s_add_u32 s37, s37, s3
    s_lshl_b32 s38, s36, 16
    s_lshl_b32 s39, s37, 10
    s_add_u32 s39, s39, s38
    s_lshl_b32 s40, s3, 10
    s_add_u32 s41, s40, {WS_KF:#x}
    s_add_u32 s42, s40, {WS_VF - 4096:#x}
    s_cmp_lt_u32 s3, 4
    s_cselect_b32 s41, s41, s42
    s_add_u32 s41, s41, s38
    s_waitcnt lgkmcnt(0)
    """)
    mk_srd(a, SWS, 14, WS_SIZE)
    a(f"buffer_load_dwordx4 {vr(Q)}, v1, {sr(SWS)}, s39 offen")
    for s in range(4):
        a(f"""
        s_add_u32 m0, s40, {KV_B + s*8192}
        buffer_load_dwordx4 v1, {sr(SWS)}, s41 offen lds
        s_add_u32 s41, s41, 4096
        """)
    a(f"""
    s_setprio {prio}
    v_and_b32 v{vPr}, 7, v2
    v_mul_u32_u24 v{vPr}, 0x104, v{vPr}
    v_add_u32 v{vPr}, {PA_B}, v{vPr}
    v_lshlrev_b32 v{vPw}, 2, v0
    v_add_u32 v{vPw}, {PA_B}, v{vPw}
    v_mov_b32 v{vKa}, v1
    v_add_u32 v{vKn}, 0x2000, v1
    s_mov_b32 s44, 0x0000ffff
    s_mov_b32 s45, 0x0000ffff
    s_mov_b32 s46, 0
    s_mov_b32 s47, 0x2000
    s_mov_b32 s48, 0x8000
    v_mov_b32 v{vPv}, 0
    """)
    for r in range(16):
        a(f"v_mov_b32 v{VF_[0]+r}, 0x3f803f80")
    for r in range(16):
        a(f"v_mov_b32 v{O_+r}, 0")
    a(f"""
    s_waitcnt vmcnt(1) lgkmcnt(0)
    s_barrier
    ds_read_b128 {vr(KF_[0])}, v{vKa}
    ds_read_b128 {vr(KF_[1])}, v{vKa} offset:1024
    s_mov_b64 exec, s[44:45]
    ds_read_b128 {vr(VF_[0])}, v{vKa} offset:4096
    ds_read_b128 {vr(VF_[0]+4)}, v{vKa} offset:4352
    s_mov_b64 exec, -1
    s_waitcnt lgkmcnt(3)
    {MFMA} {vr(S_[0],16)}, {vr(KF_[0])}, {vr(Q)}, 0
    K2_ALOOP:
    """)

    def tile(t):
        cur, nxt = t & 1, (t + 1) & 1
        a("s_waitcnt lgkmcnt(0)")
        if t == 0:
            a(f"""
            v_cmp_gt_u32 vcc, s46, v{vPv}
            s_cbranch_vccnz K2_ASLOW
            K2_AOK:
            """)
        a(f"{MFMA} {vr(S_[nxt],16)}, {vr(KF_[nxt])}, {vr(Q)}, 0")
        kt, vt = t + 2, t + 1
        ka = vKa if kt < 4 else vKn
        va = vKa if vt < 4 else vKn
        a(f"""
        ds_read_b128 {vr(KF_[cur])}, v{ka} offset:{(kt & 3)*1024}
        s_mov_b64 exec, s[44:45]
        ds_read_b128 {vr(VF_[nxt])}, v{va} offset:{4096 + (vt & 3)*1024}
        ds_read_b128 {vr(VF_[nxt]+4)}, v{va} offset:{4096 + (vt & 3)*1024 + 256}
        s_mov_b64 exec, -1
        """)
        if t == 0:
            a(f"""
            s_add_u32 m0, s40, s48
            s_add_u32 s48, s48, 0x2000
            buffer_load_dwordx4 v1, {sr(SWS)}, s41 offen lds
            s_add_u32 s41, s41, 4096
            s_cmp_eq_u32 s48, 0xc000
            s_cselect_b32 s48, 0, s48
            """)
        if t == 3:
            a(f"ds_read_b32 v{vPv}, v{vPr}")
        S = S_[cur]
        for half in range(2):
            for r in range(8):
                a(f"v_exp_f32 v{S+8*half+r}, v{S+8*half+r}")
            for r in range(4):
                a(f"v_cvt_pk_bf16_f32 v{P_+4*half+r}, v{S+8*half+2*r}, v{S+8*half+2*r+1}")
            a(f"{MFMA} {vr(O_,16)}, {vr(VF_[cur]+4*half)}, {vr(P_+4*half)}, {vr(O_,16)}")

    for t in range(4):
        tile(t)
    a(f"""
    s_waitcnt vmcnt(1)
    v_mov_b32 v{vT}, s46
    v_add_u32 v{vT}, 2, v{vT}
    ds_write_b32 v{vPw}, v{vT}
    v_mov_b32 v{vKa}, v{vKn}
    s_add_u32 s47, s47, 0x2000
    s_cmp_eq_u32 s47, 0xc000
    s_cselect_b32 s47, 0, s47
    v_add_u32 v{vKn}, s47, v1
    s_add_u32 s46, s46, 1
    s_cmp_lt_u32 s46, 16
    s_cbranch_scc1 K2_ALOOP
    """)
    a(f"""
    s_setprio 0
    s_lshl_b32 s39, s37, 15
    s_lshl_b32 s42, s36, 10
    s_add_u32 s39, s39, s42
    s_add_u32 s39, s39, {WS_OF:#x}
    s_mov_b32 s42, 0x21800000
    s_mov_b32 s43, 0x5d800000
    v_mov_b32 v{vT}, 0x207
    v_cmp_nge_f32 vcc, v{O_+8}, s42
    s_mov_b64 s[50:51], vcc
    v_cmp_nle_f32 vcc, v{O_+8}, s43
    s_or_b64 s[50:51], s[50:51], vcc
    """)
    for r in range(8):
        a(f"""
        v_cmp_class_f32 vcc, v{O_+r}, v{vT}
        s_or_b64 s[50:51], s[50:51], vcc
        """)
    if opts.get("forcefb"):
        a("s_mov_b64 s[50:51], -1")
    a(f"""
    s_cmp_lg_u64 s[50:51], 0
    s_cbranch_scc1 K2_AFB
    K2_AFIN:
    v_rcp_f32 v{vT}, v{O_+8}
    """)
    for r in range(8):
        a(f"v_mul_f32 v{O_+r}, v{O_+r}, v{vT}")
    for r in range(4):
        a(f"v_cvt_pk_bf16_f32 v{P_+r}, v{O_+2*r}, v{O_+2*r+1}")
    a(f"""
    buffer_store_dwordx4 {vr(P_)}, v1, {sr(SWS)}, s39 offen
    s_endpgm
    K2_ASLOW:
    {SAFE}
    s_sleep 1
    ds_read_b32 v{vPv}, v{vPr}
    s_waitcnt lgkmcnt(0)
    v_cmp_gt_u32 vcc, s46, v{vPv}
    s_cbranch_vccnz K2_ASLOW
    s_branch K2_AOK
    """)
    C_ = 96
    a(f"""
    K2_AFB:
    s_waitcnt vmcnt(0) lgkmcnt(0)
    s_add_u32 s41, s38, {WS_KF:#x}
    s_mov_b32 s46, 0
    v_mov_b32 v{vT}, 0xff800000
    K2_AFB1:
    buffer_load_dwordx4 {vr(KF_[0])}, v1, {sr(SWS)}, s41 offen
    s_add_u32 s41, s41, 1024
    s_waitcnt vmcnt(0)
    {MFMA} {vr(S_[0],16)}, {vr(KF_[0])}, {vr(Q)}, 0
    """)
    for r in range(8):
        a(f"v_max3_f32 v{vT}, v{S_[0]+2*r}, v{S_[0]+2*r+1}, v{vT}")
    a(f"""
    s_add_u32 s46, s46, 1
    s_cmp_lt_u32 s46, 64
    s_cbranch_scc1 K2_AFB1
    v_mov_b32 v{vT+1}, v{vT}
    v_permlane32_swap_b32 v{vT}, v{vT+1}
    v_max_f32 v{vT}, v{vT}, v{vT+1}
    """)
    for r in range(16):
        a(f"v_mul_f32 v{C_+r}, -1.0, v{vT}")
    for r in range(16):
        a(f"v_mov_b32 v{O_+r}, 0")
    a(f"""
    s_add_u32 s41, s38, {WS_KF:#x}
    s_add_u32 s42, s38, {WS_VF:#x}
    s_mov_b32 s46, 0
    K2_AFB2:
    buffer_load_dwordx4 {vr(KF_[0])}, v1, {sr(SWS)}, s41 offen
    s_mov_b64 exec, s[44:45]
    buffer_load_dwordx4 {vr(VF_[0])}, v1, {sr(SWS)}, s42 offen
    buffer_load_dwordx4 {vr(VF_[0]+4)}, v1, {sr(SWS)}, s42 offen offset:256
    s_mov_b64 exec, -1
    s_add_u32 s41, s41, 1024
    s_add_u32 s42, s42, 1024
    s_waitcnt vmcnt(0)
    {MFMA} {vr(S_[0],16)}, {vr(KF_[0])}, {vr(Q)}, {vr(C_,16)}
    """)
    for r in range(16):
        a(f"v_exp_f32 v{S_[0]+r}, v{S_[0]+r}")
    for r in range(8):
        a(f"v_cvt_pk_bf16_f32 v{P_+r}, v{S_[0]+2*r}, v{S_[0]+2*r+1}")
    a(f"""
    {MFMA} {vr(O_,16)}, {vr(VF_[0])}, {vr(P_)}, {vr(O_,16)}
    {MFMA} {vr(O_,16)}, {vr(VF_[0]+4)}, {vr(P_+4)}, {vr(O_,16)}
    s_add_u32 s46, s46, 1
    s_cmp_lt_u32 s46, 64
    s_nop 7
    s_nop 7
    s_cbranch_scc1 K2_AFB2
    s_branch K2_AFIN
    """)

    vXo, vWo, vXb, vXa, vXa2, vWb, vWc, vWn, vPr, vPw, vPv, vT, vT2 = 3, 4, 8, 9, 10, 11, 12, 13, 14, 15, 16, 17, 18
    XF, WF, ACC = [20, 24], 28, 56
    a(f"""
    K2_GEMM:
    s_sub_u32 s3, s3, 8
    s_lshr_b32 s36, s32, 1
    s_lshl_b32 s36, s36, 2
    s_add_u32 s36, s36, s34
    s_and_b32 s37, s32, 1
    s_lshl_b32 s37, s37, 3
    s_add_u32 s37, s37, s35
    """)
    a(f"""
    v_lshrrev_b32 v{vT}, 2, v2
    v_and_b32 v{vXo}, 3, v2
    v_lshrrev_b32 v{vT2}, 4, v2
    v_xor_b32 v{vXo}, v{vXo}, v{vT2}
    v_lshlrev_b32 v{vXo}, 4, v{vXo}
    v_lshl_add_u32 v{vXo}, v{vT}, 10, v{vXo}
    s_lshl_b32 s38, s36, 17
    s_lshl_b32 s39, s3, 15
    s_add_u32 s38, s38, s39
    s_add_u32 s39, s38, 0x4000
    s_and_b32 s40, s3, 1
    s_mul_i32 s41, s40, {16*3584}
    s_mul_i32 s42, s37, 224
    s_add_u32 s41, s41, s42
    """)
    for i in range(4):
        a(f"""
        v_add_u32 v{vT}, {64*i}, v2
        v_mul_u32_u24 v{vT2}, 0x4925, v{vT}
        v_lshrrev_b32 v{vT2}, 18, v{vT2}
        v_mul_u32_u24 v{vWo+i}, 14, v{vT2}
        v_sub_u32 v{vT}, v{vT}, v{vWo+i}
        v_mul_u32_u24 v{vT2}, 0xe00, v{vT2}
        v_lshl_add_u32 v{vT2}, v{vT}, 4, v{vT2}
        v_add_u32 v{vWo+i}, s41, v{vT2}
        """)
    a(f"""
    s_lshr_b32 s42, s3, 1
    s_mul_i32 s42, s42, {W_UP}
    s_mul_i32 s43, s40, 3584
    s_add_u32 s42, s42, s43
    s_add_u32 s42, s42, {W_B}
    s_lshl_b32 s43, s3, 13
    s_add_u32 s43, s43, {X_B}
    s_mov_b32 s44, 0
    s_mov_b32 s45, 0
    s_mov_b32 s46, 0
    s_waitcnt lgkmcnt(0)
    s_cmp_lt_u32 s3, 2
    s_cselect_b32 s8, s8, s10
    s_cselect_b32 s9, s9, s11
    """)
    mk_srd(a, SWS, 14, WS_SIZE)
    mk_srd(a, SX, 4, 0x200000)
    mk_srd(a, SWT, 8, 512 * 3584)
    mk_srd(a, SWD, 12, 1792 * 1024)

    def dma_w():
        a("s_add_u32 s47, s42, s45")
        for i in range(4):
            if i == 3:
                a("s_mov_b32 exec_hi, 0")
            a(f"""
            s_add_u32 m0, s47, {i*1024}
            buffer_load_dwordx4 v{vWo+i}, {sr(SWT)}, s44 offen lds
            """)
        a(f"""
        s_mov_b32 exec_hi, -1
        s_add_u32 s44, s44, {32*3584}
        s_add_u32 s45, s45, {W_SLOT}
        s_cmp_eq_u32 s45, {5*W_SLOT}
        s_cselect_b32 s45, 0, s45
        """)

    def dma_x():
        a(f"""
        s_add_u32 m0, s43, s46
        s_add_u32 s47, s43, s46
        buffer_load_dwordx4 v{vXo}, {sr(SX)}, s38 offen lds
        s_add_u32 m0, s47, 1024
        s_add_u32 s38, s38, 64
        buffer_load_dwordx4 v{vXo}, {sr(SX)}, s39 offen lds
        s_add_u32 s39, s39, 64
        s_add_u32 s46, s46, 2048
        s_and_b32 s46, s46, 0x1fff
        """)

    dma_w()
    for m in range(3):
        dma_w()
        dma_x()
    a(f"""
    v_and_b32 v{vT}, 31, v2
    v_lshrrev_b32 v{vT2}, 5, v2
    v_bfe_u32 v{vXb}, v2, 2, 2
    v_xor_b32 v{vXb}, v{vXb}, v{vT2}
    v_lshlrev_b32 v{vXb}, 4, v{vXb}
    v_lshl_add_u32 v{vXb}, v{vT}, 6, v{vXb}
    v_add_u32 v{vXb}, s43, v{vXb}
    v_bfe_u32 v{vT}, v2, 2, 2
    v_lshl_add_u32 v{vT}, v{vT2}, 3, v{vT}
    v_mul_u32_u24 v{vWb}, 0xe0, v{vT}
    v_bfe_u32 v{vT}, v2, 4, 1
    v_mul_u32_u24 v{vT}, {W_UP}, v{vT}
    v_add_u32 v{vWb}, v{vWb}, v{vT}
    v_and_b32 v{vT}, 3, v2
    v_lshl_add_u32 v{vWb}, v{vT}, 3, v{vWb}
    v_add_u32 v{vWb}, {W_B}, v{vWb}
    v_mov_b32 v{vWc}, v{vWb}
    v_mov_b32 v{vXa}, v{vXb}
    v_xor_b32 v{vXa2}, 32, v{vXb}
    v_and_b32 v{vPr}, 3, v2
    v_mul_u32_u24 v{vPr}, 0x104, v{vPr}
    v_add_u32 v{vPr}, {PG_B}, v{vPr}
    v_lshlrev_b32 v{vPw}, 2, v0
    v_add_u32 v{vPw}, {PA_B}, v{vPw}
    s_mov_b32 s48, 0
    s_mov_b32 s49, {W_SLOT}
    s_mov_b32 s50, 2048
    """)
    for r in range(112):
        a(f"v_mov_b32 v{ACC+r}, 0")

    def wread(j, va, ksp):
        for rd in range(2):
            a(f"ds_read_b64_tr_b16 {vr(WF+4*j+2*rd, 2)}, v{va} offset:{(16*ksp + 4*rd)*224 + j*32}")

    a(f"""
    s_waitcnt vmcnt(12) lgkmcnt(0)
    s_barrier
    ds_read_b128 {vr(XF[0])}, v{vXa}
    """)
    for j in range(7):
        wread(j, vWc, 0)
    a(f"""
    K2_GLOOP:
    ds_read_b128 {vr(XF[1])}, v{vXa2}
    """)
    for j in range(7):
        a(f"""
        s_waitcnt lgkmcnt(13)
        {MFMA} {vr(ACC+16*j,16)}, {vr(WF+4*j)}, {vr(XF[0])}, {vr(ACC+16*j,16)}
        """)
        wread(j, vWc, 1)
        if j == 4:
            a(f"ds_read_b32 v{vPv}, v{vPr}")
    a(f"""
    s_waitcnt lgkmcnt(4)
    v_cmp_gt_u32 vcc, s48, v{vPv}
    s_cbranch_vccnz K2_GSLOW
    K2_GOK:
    s_cmp_lt_u32 s48, 12
    s_cbranch_scc0 K2_GTAIL
    s_waitcnt vmcnt(6)
    """)
    dma_w()
    a("K2_GT2:")
    dma_x()
    a(f"""
    v_add_u32 v{vWn}, s49, v{vWb}
    v_add_u32 v{vXa}, s50, v{vXb}
    s_add_u32 s49, s49, {W_SLOT}
    s_cmp_eq_u32 s49, {5*W_SLOT}
    s_cselect_b32 s49, 0, s49
    s_add_u32 s50, s50, 2048
    s_and_b32 s50, s50, 0x1fff
    ds_read_b128 {vr(XF[0])}, v{vXa}
    """)
    for j in range(7):
        a(f"""
        s_waitcnt lgkmcnt(13)
        {MFMA} {vr(ACC+16*j,16)}, {vr(WF+4*j)}, {vr(XF[1])}, {vr(ACC+16*j,16)}
        """)
        wread(j, vWn, 0)
    a(f"""
    s_add_u32 s48, s48, 1
    v_mov_b32 v{vT}, s48
    v_xor_b32 v{vXa2}, 32, v{vXa}
    v_mov_b32 v{vWc}, v{vWn}
    ds_write_b32 v{vPw}, v{vT}
    s_cmp_lt_u32 s48, 16
    s_cbranch_scc1 K2_GLOOP
    """)
    a(f"""
    s_lshl_b32 s38, s36, 2
    s_add_u32 s38, s38, s3
    s_mul_i32 s39, s38, 112
    s_mul_i32 s40, s37, 7
    s_add_u32 s39, s39, s40
    s_lshl_b32 s39, s39, 10
    s_add_u32 s39, s39, {WS_HF:#x}
    s_add_u32 s40, s39, 4096
    s_waitcnt lgkmcnt(0)
    """)
    for j in range(7):
        A = ACC + 16 * j
        for r in range(4):
            a(f"v_pk_mul_f32 {vr(A+2*r,2)}, {vr(A+2*r,2)}, {vr(A+8+2*r,2)}")
        for r in range(4):
            a(f"v_cvt_pk_bf16_f32 v{WF+4*j+r}, v{A+2*r}, v{A+2*r+1}")
        so, off = (39, j * 1024) if j < 4 else (40, (j - 4) * 1024)
        a(f"buffer_store_dwordx4 {vr(WF+4*j)}, v1, {sr(SWS)}, s{so} offen offset:{off} sc1")
    if opts.get("nodown"):
        a("s_endpgm")
    vA0, vA1, vO = 8, 9, 10
    HB, WD2, AC2 = 20, 76, 92
    a(f"""
    s_lshr_b32 s40, s38, 1
    s_lshl_b32 s40, s40, 2
    s_lshr_b32 s41, s37, 2
    s_add_u32 s40, s40, s41
    s_lshl_b32 s40, s40, 7
    s_add_u32 s40, s40, {WS_SYNC:#x}
    s_lshl_b32 s36, s32, 2
    s_add_u32 s36, s36, s34
    s_lshl_b32 s41, s36, 2
    s_add_u32 s41, s41, s3
    s_lshl_b32 s41, s41, 7
    s_add_u32 s41, s41, {WS_SYNC:#x}
    s_lshl_b32 s42, s35, 7
    s_mul_i32 s43, s3, {DN_REG}
    s_add_u32 s43, s43, {W_B}
    s_mul_i32 s44, s3, {28*16*1024}
    s_add_u32 s45, s44, 8192
    s_mul_i32 s46, s36, {224*1024}
    s_mul_i32 s47, s3, {28*1024}
    s_add_u32 s46, s46, s47
    s_add_u32 s46, s46, {WS_HF:#x}
    s_add_u32 s47, s46, {112*1024}
    """)
    gemm_tile_addr(a, 2, vA0, vA1, vT, vT2, 43)
    gemm_dma_off(a, 2, vO, vT, vT2, 42)
    a(f"""
    v_mov_b32 v{vT}, 1
    v_mov_b32 v{vT2}, 0
    s_waitcnt vmcnt(0)
    s_mov_b64 exec, 1
    buffer_atomic_add v{vT}, v{vT2}, {sr(SWS)}, s40 offen
    s_mov_b64 exec, -1
    K2_DW1:
    {SAFE}
    ds_read_b32 v{vPv}, v{vPr}
    s_waitcnt lgkmcnt(0)
    v_cmp_gt_u32 vcc, 16, v{vPv}
    s_cbranch_vccnz K2_DW1
    s_mov_b32 s48, s44
    s_mov_b32 s49, s45
    """)
    for i in range(7):
        a(f"""
        s_add_u32 m0, s43, {i*2048}
        buffer_load_dwordx4 v{vO}, {sr(SWD)}, s48 offen lds
        s_add_u32 m0, s43, {i*2048 + 1024}
        s_add_u32 s48, s48, 0x4000
        buffer_load_dwordx4 v{vO}, {sr(SWD)}, s49 offen lds
        s_add_u32 s49, s49, 0x4000
        """)
    for r in range(64):
        a(f"v_mov_b32 v{AC2+r}, 0")
    a(f"""
    s_mov_b32 s50, {spin}
    K2_DPOLL:
    s_cmp_eq_u32 s50, 0
    s_cbranch_scc1 K2_DABORT
    s_sub_u32 s50, s50, 1
    buffer_load_dword v{vT}, v{vT2}, {sr(SWS)}, s41 offen sc1
    s_waitcnt vmcnt(0)
    v_readfirstlane_b32 s51, v{vT}
    s_cmp_ge_u32 s51, 8
    s_cbranch_scc1 K2_DGO
    s_sleep 4
    s_branch K2_DPOLL
    K2_DGO:
    """)

    def dn_issue(i):
        a(f"""
        buffer_load_dwordx4 {vr(HB+8*i)}, v1, {sr(SWS)}, s46 offen sc1
        buffer_load_dwordx4 {vr(HB+8*i+4)}, v1, {sr(SWS)}, s47 offen sc1
        s_add_u32 m0, s43, {i*2048}
        s_add_u32 s46, s46, 1024
        buffer_load_dwordx4 v{vO}, {sr(SWD)}, s44 offen lds
        s_add_u32 m0, s43, {i*2048 + 1024}
        s_add_u32 s47, s47, 1024
        buffer_load_dwordx4 v{vO}, {sr(SWD)}, s45 offen lds
        s_add_u32 s44, s44, 0x4000
        s_add_u32 s45, s45, 0x4000
        """)

    for i in range(7):
        dn_issue(i)
    a("""
    s_mov_b32 s50, 0
    K2_DLOOP:
    """)
    for i in range(7):
        w = WD2 + 8 * (i & 1)
        a(f"""
        s_waitcnt vmcnt(24)
        ds_read_b64_tr_b16 {vr(w,2)}, v{vA0} offset:{i*2048}
        ds_read_b64_tr_b16 {vr(w+2,2)}, v{vA0} offset:{i*2048+1024}
        ds_read_b64_tr_b16 {vr(w+4,2)}, v{vA1} offset:{i*2048}
        ds_read_b64_tr_b16 {vr(w+6,2)}, v{vA1} offset:{i*2048+1024}
        s_waitcnt lgkmcnt(2)
        {MFMA} {vr(AC2,16)}, {vr(w)}, {vr(HB+8*i)}, {vr(AC2,16)}
        {MFMA} {vr(AC2+16,16)}, {vr(w)}, {vr(HB+8*i+4)}, {vr(AC2+16,16)}
        s_waitcnt lgkmcnt(0)
        {MFMA} {vr(AC2+32,16)}, {vr(w+4)}, {vr(HB+8*i)}, {vr(AC2+32,16)}
        {MFMA} {vr(AC2+48,16)}, {vr(w+4)}, {vr(HB+8*i+4)}, {vr(AC2+48,16)}
        """)
        dn_issue(i)
    a(f"""
    s_add_u32 s50, s50, 1
    s_cmp_lt_u32 s50, 4
    s_cbranch_scc1 K2_DLOOP
    s_waitcnt vmcnt(0)
    v_add_u32 v{vA0}, s43, v1
    v_add_u32 v{vA1}, {W_B}, v1
    s_lshl_b32 s44, s3, 12
    v_add_u32 v{vA1}, s44, v{vA1}
    """)
    for q in range(4):
        for i in range(4):
            a(f"ds_write_b128 v{vA0}, {vr(AC2+16*q+4*i)} offset:{q*4096 + i*1024}")
    a(f"""
    v_mov_b32 v{vT}, 17
    s_waitcnt lgkmcnt(0)
    ds_write_b32 v{vPw}, v{vT}
    K2_DW2:
    {SAFE}
    ds_read_b32 v{vPv}, v{vPr}
    s_waitcnt lgkmcnt(0)
    v_cmp_gt_u32 vcc, 17, v{vPv}
    s_cbranch_vccnz K2_DW2
    v_cmp_lt_u32 vcc, 17, v{vPv}
    s_cbranch_vccnz K2_END
    """)
    for g in range(4):
        for i in range(4):
            a(f"ds_read_b128 {vr(AC2+16*g+4*i)}, v{vA1} offset:{g*DN_REG + i*1024}")
    a(f"""
    s_lshl_b32 s44, s36, 3
    s_add_u32 s44, s44, s35
    s_lshl_b32 s45, s44, 2
    s_add_u32 s45, s45, s3
    s_lshl_b32 s46, s45, 11
    s_add_u32 s46, s46, {WS_BB:#x}
    s_lshl_b32 s45, s45, 2
    s_add_u32 s45, s45, {WS_SYNC + 16384:#x}
    s_waitcnt lgkmcnt(8)
    """)
    for r in range(8):
        a(f"v_pk_add_f32 {vr(AC2+2*r,2)}, {vr(AC2+2*r,2)}, {vr(AC2+16+2*r,2)}")
    a("s_waitcnt lgkmcnt(0)")
    for r in range(8):
        a(f"v_pk_add_f32 {vr(AC2+32+2*r,2)}, {vr(AC2+32+2*r,2)}, {vr(AC2+48+2*r,2)}")
    for r in range(8):
        a(f"v_pk_add_f32 {vr(AC2+2*r,2)}, {vr(AC2+2*r,2)}, {vr(AC2+32+2*r,2)}")
    for r in range(8):
        a(f"v_cvt_pk_bf16_f32 v{HB+r}, v{AC2+2*r}, v{AC2+2*r+1}")
    a(f"""
    buffer_store_dwordx4 {vr(HB)}, v1, {sr(SWS)}, s46 offen
    buffer_store_dwordx4 {vr(HB+4)}, v1, {sr(SWS)}, s46 offen offset:1024
    v_mov_b32 v{vT}, 1
    s_mov_b64 exec, 1
    buffer_store_dword v{vT}, v{vT2}, {sr(SWS)}, s45 offen
    K2_END:
    s_endpgm
    K2_DABORT:
    v_mov_b32 v{vT}, 0x1000
    s_waitcnt vmcnt(0)
    ds_write_b32 v{vPw}, v{vT}
    s_waitcnt lgkmcnt(0)
    s_endpgm
    K2_GSLOW:
    {SAFE}
    ds_read_b32 v{vPv}, v{vPr}
    s_waitcnt lgkmcnt(0)
    v_cmp_gt_u32 vcc, s48, v{vPv}
    s_cbranch_vccnz K2_GSLOW
    s_branch K2_GOK
    K2_GTAIL:
    s_waitcnt vmcnt(2)
    s_branch K2_GT2
    """)


def gen_k3(a, opts):
    a.raw(".globl k3_kernel\n.p2align 8\n.type k3_kernel,@function\nk3_kernel:")
    SWS, SWO, SOUT, SWD = 16, 20, 24, 28
    vA0, vA1, vO, vT, vT2, vG, vOa = 3, 4, 5, 6, 7, 8, 9
    BB_, W2, OB, AC, AB = 12, 20, 36, 100, 164
    a(f"""
    s_cmp_ge_u32 s2, 0x100
    s_cbranch_scc1 K3_END
    s_load_dwordx2 s[4:5], s[0:1], 16
    s_load_dwordx2 s[6:7], s[0:1], 48
    s_load_dwordx2 s[8:9], s[0:1], 64
    s_load_dwordx2 s[14:15], s[0:1], 80
    v_lshrrev_b32 v1, 6, v0
    v_and_b32 v2, 63, v0
    v_readfirstlane_b32 s3, v1
    s_and_b32 s32, s2, 7
    s_lshr_b32 s33, s2, 3
    s_and_b32 s34, s33, 3
    s_lshr_b32 s35, s33, 2
    s_lshl_b32 s36, s32, 2
    s_add_u32 s36, s36, s34
    v_lshlrev_b32 v1, 4, v2
    s_lshl_b32 s42, s35, 7
    s_lshl_b32 s43, s3, 14
    s_lshl_b32 s44, s3, 17
    s_add_u32 s45, s44, 8192
    s_lshl_b32 s46, s36, 16
    s_lshl_b32 s47, s3, 13
    s_add_u32 s46, s46, s47
    s_add_u32 s46, s46, {WS_OF:#x}
    s_add_u32 s47, s46, 0x8000
    s_lshl_b32 s37, s36, 3
    s_add_u32 s37, s37, s35
    s_lshl_b32 s38, s37, 4
    s_add_u32 s38, s38, {WS_SYNC + 16384:#x}
    s_lshl_b32 s39, s37, 2
    s_add_u32 s39, s39, s3
    s_lshl_b32 s39, s39, 11
    s_add_u32 s39, s39, {WS_BB:#x}
    """)
    gemm_dma_off(a, 2, vO, vT, vT2, 42)
    a("s_waitcnt lgkmcnt(0)")
    mk_srd(a, SWS, 14, WS_SIZE)
    mk_srd(a, SWO, 4, 512 * 1024)
    a("s_load_dwordx4 s[52:55], s[14:15], s38")
    for i in range(8):
        a(f"""
        s_add_u32 m0, s43, {i*2048}
        buffer_load_dwordx4 {vr(OB+8*i)}, v1, {sr(SWS)}, s46 offen offset:{(i&3)*1024}
        buffer_load_dwordx4 v{vO}, {sr(SWO)}, s44 offen lds
        s_add_u32 m0, s43, {i*2048 + 1024}
        buffer_load_dwordx4 {vr(OB+8*i+4)}, v1, {sr(SWS)}, s47 offen offset:{(i&3)*1024}
        buffer_load_dwordx4 v{vO}, {sr(SWO)}, s45 offen lds
        s_add_u32 s44, s44, 0x4000
        s_add_u32 s45, s45, 0x4000
        """)
        if i == 3:
            a("s_add_u32 s46, s46, 4096\n s_add_u32 s47, s47, 4096")
    a(f"""
    buffer_load_dwordx4 {vr(BB_)}, v1, {sr(SWS)}, s39 offen
    buffer_load_dwordx4 {vr(BB_+4)}, v1, {sr(SWS)}, s39 offen offset:1024
    s_and_b32 s40, s3, 1
    s_lshl_b32 s41, s36, 1
    s_add_u32 s41, s41, s40
    s_lshl_b32 s48, s41, 7
    s_add_u32 s48, s48, {WS_G:#x}
    v_and_b32 v{vT}, 31, v2
    v_lshlrev_b32 v{vT2}, 2, v{vT}
    buffer_load_dword v{vG}, v{vT2}, {sr(SWS)}, s48 offen
    v_lshrrev_b32 v{vOa}, 5, v2
    v_lshlrev_b32 v{vOa}, 4, v{vOa}
    v_lshl_add_u32 v{vOa}, v{vT}, 10, v{vOa}
    s_lshl_b32 s49, s41, 15
    s_add_u32 s49, s49, s42
    s_lshr_b32 s40, s3, 1
    s_lshl_b32 s40, s40, 6
    s_add_u32 s49, s49, s40
    """)
    mk_srd(a, SOUT, 8, 2048 * 1024)
    gemm_tile_addr(a, 2, vA0, vA1, vT, vT2, 43)
    for i in range(8):
        w = W2 + 8 * (i & 1)
        c = [("0" if i == 0 else vr(AC + 16 * q, 16)) for q in range(4)]
        a(f"""
        s_waitcnt vmcnt({3 + 4*(7-i)})
        ds_read_b64_tr_b16 {vr(w,2)}, v{vA0} offset:{i*2048}
        ds_read_b64_tr_b16 {vr(w+2,2)}, v{vA0} offset:{i*2048+1024}
        ds_read_b64_tr_b16 {vr(w+4,2)}, v{vA1} offset:{i*2048}
        ds_read_b64_tr_b16 {vr(w+6,2)}, v{vA1} offset:{i*2048+1024}
        s_waitcnt lgkmcnt(2)
        {MFMA} {vr(AC,16)}, {vr(w)}, {vr(OB+8*i)}, {c[0]}
        {MFMA} {vr(AC+16,16)}, {vr(w)}, {vr(OB+8*i+4)}, {c[1]}
        s_waitcnt lgkmcnt(0)
        {MFMA} {vr(AC+32,16)}, {vr(w+4)}, {vr(OB+8*i)}, {c[2]}
        {MFMA} {vr(AC+48,16)}, {vr(w+4)}, {vr(OB+8*i+4)}, {c[3]}
        """)
    a(f"""
    s_and_b32 s52, s52, s53
    s_and_b32 s54, s54, s55
    s_and_b32 s52, s52, s54
    s_cmp_eq_u32 s52, 1
    s_cbranch_scc0 K3_FB
    K3_RED:
    v_add_u32 v{vT}, s43, v1
    s_lshl_b32 s44, s3, 12
    v_add_u32 v{vT2}, s44, v1
    """)
    for q in range(4):
        for i in range(4):
            a(f"ds_write_b128 v{vT}, {vr(AC+16*q+4*i)} offset:{q*4096 + i*1024}")
    a("""
    s_waitcnt lgkmcnt(0)
    s_barrier
    """)
    for g in range(4):
        for i in range(4):
            a(f"ds_read_b128 {vr(AC+16*g+4*i)}, v{vT2} offset:{g*16384 + i*1024}")
    a(f"""
    s_waitcnt vmcnt(0)
    v_lshlrev_b32 v{vA0}, 16, v{vG}
    v_and_b32 v{vA1}, 0xffff0000, v{vG}
    """)
    for r in range(8):
        a(f"""
        v_lshlrev_b32 v{OB+2*r}, 16, v{BB_+r}
        v_and_b32 v{OB+2*r+1}, 0xffff0000, v{BB_+r}
        """)
    for r in range(16):
        a(f"v_mul_f32 v{OB+r}, v{OB+r}, v{vA1}")
    a("s_waitcnt lgkmcnt(8)")
    for r in range(8):
        a(f"v_pk_add_f32 {vr(AC+2*r,2)}, {vr(AC+2*r,2)}, {vr(AC+16+2*r,2)}")
    a("s_waitcnt lgkmcnt(0)")
    for r in range(8):
        a(f"v_pk_add_f32 {vr(AC+32+2*r,2)}, {vr(AC+32+2*r,2)}, {vr(AC+48+2*r,2)}")
    for r in range(8):
        a(f"v_pk_add_f32 {vr(AC+2*r,2)}, {vr(AC+2*r,2)}, {vr(AC+32+2*r,2)}")
    for r in range(16):
        a(f"v_fmac_f32 v{OB+r}, v{AC+r}, v{vA0}")
    for r in range(8):
        a(f"v_cvt_pk_bf16_f32 v{BB_+r}, v{OB+2*r}, v{OB+2*r+1}")
    a(f"""
    v_permlane32_swap_b32 v{BB_}, v{BB_+2}
    v_permlane32_swap_b32 v{BB_+1}, v{BB_+3}
    v_permlane32_swap_b32 v{BB_+4}, v{BB_+6}
    v_permlane32_swap_b32 v{BB_+5}, v{BB_+7}
    buffer_store_dwordx4 {vr(BB_)}, v{vOa}, {sr(SOUT)}, s49 offen
    buffer_store_dwordx4 {vr(BB_+4)}, v{vOa}, {sr(SOUT)}, s49 offen offset:32
    K3_END:
    s_endpgm
    K3_FB:
    """)
    mk_srd(a, SWD, 6, 1792 * 1024)
    a(f"""
    s_mul_i32 s44, s3, {28*16*1024}
    s_add_u32 s45, s44, 8192
    s_mul_i32 s46, s36, {224*1024}
    s_mul_i32 s47, s3, {28*1024}
    s_add_u32 s46, s46, s47
    s_add_u32 s46, s46, {WS_HF:#x}
    s_add_u32 s47, s46, {112*1024}
    s_lshl_b32 s48, s36, 8
    s_add_u32 s48, s48, {WS_G:#x}
    v_and_b32 v{vT}, 31, v2
    v_lshlrev_b32 v{vT}, 2, v{vT}
    s_waitcnt vmcnt(0)
    buffer_load_dword v{BB_}, v{vT}, {sr(SWS)}, s48 offen
    buffer_load_dword v{BB_+1}, v{vT}, {sr(SWS)}, s48 offen offset:128
    s_mov_b32 s50, 0
    """)
    for r in range(64):
        a(f"v_mov_b32 v{AB+r}, 0")
    a(f"""
    K3_FBL:
    s_mov_b32 m0, s43
    buffer_load_dwordx4 {vr(OB)}, v1, {sr(SWS)}, s46 offen
    buffer_load_dwordx4 v{vO}, {sr(SWD)}, s44 offen lds
    s_add_u32 m0, s43, 1024
    buffer_load_dwordx4 {vr(OB+4)}, v1, {sr(SWS)}, s47 offen
    buffer_load_dwordx4 v{vO}, {sr(SWD)}, s45 offen lds
    s_add_u32 s44, s44, 0x4000
    s_add_u32 s45, s45, 0x4000
    s_add_u32 s46, s46, 1024
    s_add_u32 s47, s47, 1024
    s_waitcnt vmcnt(0)
    ds_read_b64_tr_b16 {vr(W2,2)}, v{vA0}
    ds_read_b64_tr_b16 {vr(W2+2,2)}, v{vA0} offset:1024
    ds_read_b64_tr_b16 {vr(W2+4,2)}, v{vA1}
    ds_read_b64_tr_b16 {vr(W2+6,2)}, v{vA1} offset:1024
    s_waitcnt lgkmcnt(0)
    {MFMA} {vr(AB,16)}, {vr(W2)}, {vr(OB)}, {vr(AB,16)}
    {MFMA} {vr(AB+16,16)}, {vr(W2)}, {vr(OB+4)}, {vr(AB+16,16)}
    {MFMA} {vr(AB+32,16)}, {vr(W2+4)}, {vr(OB)}, {vr(AB+32,16)}
    {MFMA} {vr(AB+48,16)}, {vr(W2+4)}, {vr(OB+4)}, {vr(AB+48,16)}
    s_add_u32 s50, s50, 1
    s_cmp_lt_u32 s50, 28
    s_cbranch_scc1 K3_FBL
    v_lshlrev_b32 v{W2}, 16, v{BB_}
    v_and_b32 v{W2+1}, 0xffff0000, v{BB_}
    v_lshlrev_b32 v{W2+2}, 16, v{BB_+1}
    v_and_b32 v{W2+3}, 0xffff0000, v{BB_+1}
    """)
    for q in range(4):
        ru = q & 1
        for r in range(16):
            a(f"""
            v_mul_f32 v{AC+16*q+r}, v{AC+16*q+r}, v{W2+2*ru}
            v_fmac_f32 v{AC+16*q+r}, v{AB+16*q+r}, v{W2+2*ru+1}
            """)
    for r in range(8):
        a(f"v_mov_b32 v{BB_+r}, 0")
    a(f"""
    v_mov_b32 v{vG}, 0x3f80
    s_branch K3_RED
    """)
```

```python
import sys, os
sys.path.insert(0, os.path.dirname(os.path.abspath(__file__)))
from asmlib import Asm

WS_QF = 0
WS_KF = 0x200000
WS_VF = 0x400000
WS_HF = 0x800000
WS_OF = 0x1000000
WS_BB = 0x1200000
WS_G = 0x1400000
WS_SYNC = 0x1410000
WS_SIZE = 0x1420000
QSCALE = 0x3EB8AA3B
LOG2E = 0x3FB8AA3B
MFMA = "v_mfma_f32_32x32x16_bf16"


def vr(a, n=4):
    return f"v[{a}:{a+n-1}]"


def sr(a, n=4):
    return f"s[{a}:{a+n-1}]"


def mk_srd(a, dst, lo, size):
    a(f"""
    s_mov_b32 s{dst}, s{lo}
    s_and_b32 s{dst+1}, s{lo+1}, 0xffff
    s_mov_b32 s{dst+2}, {size:#x}
    s_mov_b32 s{dst+3}, 0x00020000
    """)


K1_LDS = 81920 + 5 * 12288


def gen_k1(a):
    a.raw(".globl k1_kernel\n.p2align 8\n.type k1_kernel,@function\nk1_kernel:")
    SX, SW, SG, SWS = 12, 16, 20, 24
    a(f"""
    s_cmp_ge_u32 s2, 0x100
    s_cbranch_scc1 K1_END
    s_load_dwordx4 s[4:7], s[0:1], 0
    s_load_dwordx2 s[8:9], s[0:1], 56
    s_load_dwordx2 s[10:11], s[0:1], 80
    s_and_b32 s3, s2, 7
    s_lshr_b32 s28, s2, 3
    s_lshr_b32 s29, s3, 1
    s_lshl_b32 s29, s29, 2
    s_and_b32 s30, s28, 3
    s_add_u32 s29, s29, s30
    s_and_b32 s30, s3, 1
    s_lshl_b32 s30, s30, 3
    s_lshr_b32 s31, s28, 2
    s_add_u32 s30, s30, s31
    v_lshrrev_b32 v1, 6, v0
    v_and_b32 v2, 63, v0
    v_readfirstlane_b32 s31, v1
    v_lshlrev_b32 v3, 5, v0
    v_and_b32 v4, 31, v0
    v_lshlrev_b32 v4, 5, v4
    """)
    a(f"""
    v_lshrrev_b32 v5, 3, v2
    v_lshlrev_b32 v5, 10, v5
    v_and_b32 v6, 7, v2
    v_lshrrev_b32 v7, 4, v2
    v_xor_b32 v6, v6, v7
    v_lshl_add_u32 v5, v6, 4, v5
    s_lshl_b32 s32, s31, 15
    v_add_u32 v8, s32, v5
    v_xor_b32 v9, 64, v8
    v_add_u32 v9, 0x2000, v9
    v_add_u32 v10, 0x4000, v8
    v_add_u32 v11, 0x4000, v9
    """)
    a(f"""
    s_mul_i32 s32, s31, 192
    s_lshl_b32 s33, s30, 6
    """)
    for i in range(3):
        a(f"""
        v_add_u32 v5, s32, v2
        v_add_u32 v5, {64*i}, v5
        v_mul_u32_u24 v6, 0xaaab, v5
        v_lshrrev_b32 v6, 19, v6
        v_mul_u32_u24 v7, 12, v6
        v_sub_u32 v7, v5, v7
        v_mul_u32_u24 v6, 0xc00, v6
        v_lshrrev_b32 v5, 2, v7
        v_lshl_add_u32 v6, v5, 10, v6
        v_and_b32 v7, 3, v7
        v_lshl_add_u32 v6, v7, 4, v6
        v_add_u32 v{12+i}, s33, v6
        """)
    a(f"""
    s_lshl_b32 s34, s29, 17
    s_lshl_b32 s35, s30, 13
    s_add_u32 s35, s35, s34
    s_mov_b32 s36, 0
    s_mul_i32 s37, s31, 20480
    s_mul_i32 s38, s31, 3072
    s_waitcnt lgkmcnt(0)
    """)
    mk_srd(a, SX, 4, 0x200000)
    mk_srd(a, SW, 6, 0x180000)
    mk_srd(a, SG, 8, 0x400)
    mk_srd(a, SWS, 10, WS_SIZE)
    a(f"""
    buffer_load_dwordx4 v[112:115], v3, {sr(SX)}, s35 offen
    buffer_load_dwordx4 v[116:119], v3, {sr(SX)}, s35 offen offset:16
    buffer_load_dwordx4 v[120:123], v4, {sr(SG)}, 0 offen
    buffer_load_dwordx4 v[124:127], v4, {sr(SG)}, 0 offen offset:16
    """)

    def dma(s):
        slot = s % 5
        for i in range(3):
            a(f"""
            s_add_u32 m0, s38, {81920 + slot*12288 + i*1024}
            buffer_load_dwordx4 v{12+i}, {sr(SW)}, s36 offen lds
            """)
        for i in range(4):
            a(f"""
            s_add_u32 m0, s37, {slot*4096 + i*1024}
            buffer_load_dwordx4 v{8+i}, {sr(SX)}, s34 offen lds
            """)
        a(f"""
        s_add_u32 s34, s34, 128
        s_add_u32 s36, s36, 196608
        """)

    for s in range(5):
        dma(s)
    a(f"""
    v_and_b32 v5, 31, v2
    v_lshrrev_b32 v6, 5, v2
    v_lshrrev_b32 v7, 1, v5
    v_and_b32 v7, 7, v7
    v_xor_b32 v7, v7, v6
    v_lshlrev_b32 v7, 4, v7
    v_lshl_add_u32 v7, v5, 7, v7
    v_add_u32 v16, s37, v7
    v_xor_b32 v17, 32, v16
    v_xor_b32 v18, 64, v16
    v_xor_b32 v19, 0x60, v16
    v_bfe_u32 v5, v2, 2, 2
    v_lshl_add_u32 v5, v6, 3, v5
    v_mul_u32_u24 v5, 0xc0, v5
    v_bfe_u32 v7, v2, 4, 1
    v_lshl_add_u32 v5, v7, 5, v5
    v_and_b32 v7, 3, v2
    v_lshl_add_u32 v5, v7, 3, v5
    v_add_u32 v20, 0x14000, v5
    """)
    a("s_waitcnt vmcnt(35)")
    a("v_mov_b32 v21, 0")
    for p in range(8):
        xs, ws_ = 112 + p, 120 + p
        a(f"""
        v_lshlrev_b32 v5, 16, v{xs}
        v_and_b32 v6, 0xffff0000, v{xs}
        v_lshlrev_b32 v7, 16, v{ws_}
        v_and_b32 v22, 0xffff0000, v{ws_}
        v_mul_f32 v5, v5, v7
        v_mul_f32 v6, v6, v22
        v_cvt_pk_bf16_f32 v5, v5, v6
        v_lshlrev_b32 v6, 16, v5
        v_and_b32 v5, 0xffff0000, v5
        v_add_f32 v21, v21, v6
        v_add_f32 v21, v21, v5
        """)
    for sh in (1, 2, 4, 8):
        a(f"v_add_f32_dpp v21, v21, v21 row_shr:{sh} row_mask:0xf bank_mask:0xf bound_ctrl:0")
    a("v_add_f32_dpp v21, v21, v21 row_bcast:15 row_mask:0xa bank_mask:0xf")
    a(f"""
    v_cvt_pk_bf16_f32 v21, v21, v21
    v_lshlrev_b32 v21, 16, v21
    v_mul_f32 v21, 0xbfb8aa3b, v21
    v_exp_f32 v21, v21
    v_add_f32 v21, 1.0, v21
    v_rcp_f32 v21, v21
    v_cvt_pk_bf16_f32 v21, v21, v21
    v_lshlrev_b32 v22, 16, v21
    v_sub_f32 v22, 1.0, v22
    v_cvt_pk_bf16_f32 v22, v22, v22
    v_and_b32 v21, 0xffff, v21
    v_lshl_or_b32 v21, v22, 16, v21
    """)
    XF = [24, 28]
    WF = [[32, 36, 40], [44, 48, 52]]
    ACC = [64, 80, 96]

    def reads(slot, ks):
        b = ks & 1
        a(f"ds_read_b128 {vr(XF[b])}, v{16+ks} offset:{slot*4096}")
        for u in range(3):
            for rd in range(2):
                off = slot * 12288 + (16 * ks + 4 * rd) * 192 + u * 64
                a(f"ds_read_b64_tr_b16 {vr(WF[b][u]+2*rd, 2)}, v20 offset:{off}")

    def mfmas(ks, first):
        b = ks & 1
        for u in range(3):
            c = "0" if first else vr(ACC[u], 16)
            if u < 2:
                a(f"{MFMA} {vr(ACC[u],16)}, {vr(WF[b][u])}, {vr(XF[b])}, {c}")
            else:
                a(f"{MFMA} {vr(ACC[u],16)}, {vr(XF[b])}, {vr(WF[b][u])}, {c}")

    waits = [28, 21, 21, 21, 21, 14, 7, 0]
    for s in range(8):
        slot = s % 5
        a(f"s_waitcnt vmcnt({waits[s]})")
        a("s_barrier")
        reads(slot, 0)
        reads(slot, 1)
        if 1 <= s <= 3:
            dma(s + 4)
        a("s_waitcnt lgkmcnt(7)")
        mfmas(0, s == 0)
        reads(slot, 2)
        a("s_waitcnt lgkmcnt(7)")
        mfmas(1, False)
        reads(slot, 3)
        a("s_waitcnt lgkmcnt(7)")
        mfmas(2, False)
        a("s_waitcnt lgkmcnt(0)")
        mfmas(3, False)
    a(f"""
    s_lshl_b32 s32, s29, 2
    s_add_u32 s32, s32, s31
    s_lshl_b32 s33, s30, 17
    s_lshl_b32 s34, s32, 10
    s_add_u32 s33, s33, s34
    s_add_u32 s34, s33, 0x10000
    s_add_u32 s35, s33, {WS_KF:#x}
    s_add_u32 s36, s34, {WS_KF:#x}
    s_add_u32 s37, s33, {WS_VF:#x}
    v_lshlrev_b32 v3, 4, v2
    v_bfe_u32 v5, v2, 4, 1
    v_lshlrev_b32 v5, 16, v5
    v_lshrrev_b32 v6, 5, v2
    v_lshl_add_u32 v5, v6, 9, v5
    v_and_b32 v6, 15, v2
    v_lshl_add_u32 v4, v6, 4, v5
    s_mov_b32 s38, {QSCALE:#x}
    """)
    for r in range(16):
        a(f"v_mul_f32 v{64+r}, s38, v{64+r}")
    for r in range(8):
        a(f"v_cvt_pk_bf16_f32 v{24+r}, v{64+2*r}, v{65+2*r}")
    a(f"""
    buffer_store_dwordx4 v[24:27], v3, {sr(SWS)}, s33 offen
    buffer_store_dwordx4 v[28:31], v3, {sr(SWS)}, s34 offen
    """)
    for r in range(8):
        a(f"v_cvt_pk_bf16_f32 v{32+r}, v{80+2*r}, v{81+2*r}")
    a(f"""
    buffer_store_dwordx4 v[32:35], v3, {sr(SWS)}, s35 offen
    buffer_store_dwordx4 v[36:39], v3, {sr(SWS)}, s36 offen
    """)
    for r in range(8):
        a(f"v_cvt_pk_bf16_f32 v{40+r}, v{96+2*r}, v{97+2*r}")
    a(f"""
    buffer_store_dwordx4 v[40:43], v4, {sr(SWS)}, s37 offen
    buffer_store_dwordx4 v[44:47], v4, {sr(SWS)}, s37 offen offset:256
    """)
    a(f"""
    s_lshl_b32 s32, s29, 9
    s_lshl_b32 s33, s30, 5
    s_add_u32 s32, s32, s33
    s_add_u32 s32, s32, {WS_G:#x}
    v_lshrrev_b32 v5, 5, v0
    v_lshlrev_b32 v5, 2, v5
    s_mov_b32 exec_lo, 0x80000000
    s_mov_b32 exec_hi, 0x80000000
    buffer_store_dword v21, v5, {sr(SWS)}, s32 offen
    s_cmp_lg_u32 s31, 0
    s_cbranch_scc1 K1_END
    s_mov_b32 exec_lo, -1
    s_mov_b32 exec_hi, 0
    v_mov_b32 v6, 0
    v_lshlrev_b32 v5, 2, v0
    s_lshl_b32 s32, s2, 7
    s_add_u32 s32, s32, {WS_SYNC:#x}
    buffer_store_dword v6, v5, {sr(SWS)}, s32 offen
    K1_END:
    s_endpgm
    """)


def desc(name, nv, ns=102):
    return f""".p2align 6
.amdhsa_kernel {name}
  .amdhsa_next_free_vgpr {nv}
  .amdhsa_next_free_sgpr {ns}
  .amdhsa_accum_offset {nv}
  .amdhsa_group_segment_fixed_size 0
  .amdhsa_kernarg_size 88
  .amdhsa_user_sgpr_count 2
  .amdhsa_user_sgpr_kernarg_segment_ptr 1
  .amdhsa_system_sgpr_workgroup_id_x 1
.end_amdhsa_kernel
"""


def build(path, kernels=("k1", "k2", "k3"), opts=None):
    opts = opts or {}
    import k23
    head = "; gated_mix (attention block + bilinear GLU), three launches; generated by a script\n"
    descs = ""
    body = ""
    for k in kernels:
        a = Asm()
        if k == "k1":
            gen_k1(a)
            head += f"; @launch kernel=k1_kernel grid=(256,1,1) block=(256,1,1) lds={K1_LDS}\n"
            descs += desc("k1_kernel", 128)
        elif k == "k2":
            k23.gen_k2(a, opts)
            head += f"; @launch kernel=k2_kernel grid=(256,1,1) block=(768,1,1) lds={k23.K2_LDS}\n"
            descs += desc("k2_kernel", 168)
        elif k == "k3":
            k23.gen_k3(a, opts)
            head += f"; @launch kernel=k3_kernel grid=(256,1,1) block=(256,1,1) lds={k23.K3_LDS}\n"
            descs += desc("k3_kernel", 256)
        errs = a.check_edges()
        for e in errs:
            print("HAZARD", k, e)
        body += a.text()
    txt = head + '.amdgcn_target "amdgcn-amd-amdhsa--gfx950"\n.text\n' + body + '.section .rodata,"a"\n' + descs
    open(path, "w").write(txt)


if __name__ == "__main__":
    ks = sys.argv[2].split(",") if len(sys.argv) > 2 else ("k1", "k2", "k3")
    opts = dict(x.split("=") for x in sys.argv[3:])
    build(sys.argv[1], ks, opts)
```

```python
from gen import *

KV_B = 0
X_B = 49152
W_B = 81920
W_SLOT = 14592
W_UP = 7296
PA_B = W_B + 5 * W_SLOT
PG_B = PA_B + 2048
K2_LDS = PG_B + 1024
DN_REG = 16384
K3_LDS = 4 * 16384


def gemm_tile_addr(a, vlane, vA0, vA1, vtmp, vtmp2, sbase):
    a(f"""
    v_bfe_u32 v{vtmp}, v{vlane}, 2, 2
    v_lshrrev_b32 v{vtmp2}, 5, v{vlane}
    v_lshl_add_u32 v{vA0}, v{vtmp2}, 2, v{vtmp}
    v_lshlrev_b32 v{vA0}, 7, v{vA0}
    v_lshrrev_b32 v{vtmp}, 1, v{vtmp}
    v_lshl_add_u32 v{vA0}, v{vtmp}, 6, v{vA0}
    v_bfe_u32 v{vtmp}, v{vlane}, 4, 1
    v_lshl_add_u32 v{vA0}, v{vtmp}, 5, v{vA0}
    v_and_b32 v{vtmp}, 3, v{vlane}
    v_lshl_add_u32 v{vA0}, v{vtmp}, 3, v{vA0}
    v_add_u32 v{vA0}, s{sbase}, v{vA0}
    v_xor_b32 v{vA1}, 64, v{vA0}
    """)


def gemm_dma_off(a, vlane, vO, vtmp, vtmp2, sct128):
    a(f"""
    v_lshrrev_b32 v{vtmp}, 3, v{vlane}
    v_bfe_u32 v{vtmp2}, v{vlane}, 4, 1
    v_lshlrev_b32 v{vtmp2}, 2, v{vtmp2}
    v_and_b32 v{vO}, 7, v{vlane}
    v_xor_b32 v{vO}, v{vO}, v{vtmp2}
    v_lshlrev_b32 v{vO}, 4, v{vO}
    v_lshl_add_u32 v{vO}, v{vtmp}, 10, v{vO}
    v_add_u32 v{vO}, s{sct128}, v{vO}
    """)


def gen_k2(a, opts):
    spin = int(opts.get("spin", 400))
    prio = int(opts.get("prio", 2))
    gprio = int(opts.get("gprio", 0))
    gap = opts.get("gap", "0")
    def GAP():
        if gap.startswith("s"):
            a(f"s_sleep {gap[1:]}")
        else:
            n = int(gap)
            while n > 0:
                k = min(n, 16)
                a(f"s_nop {k-1}")
                n -= k
    safe = int(opts.get("safe", 0))
    SAFE = "s_add_u32 s60, s60, 1\n s_cmp_gt_u32 s60, 0x40000\n s_cbranch_scc1 K2_END\n" if safe else ""
    a.raw(".globl k2_kernel\n.p2align 8\n.type k2_kernel,@function\nk2_kernel:")
    SWS, SX, SWT, SWD = 16, 20, 24, 28
    a(f"""
    s_cmp_ge_u32 s2, 0x100
    s_cbranch_scc1 K2_END
    """)
    stamp(a, 0)
    a(f"""
    s_load_dwordx2 s[4:5], s[0:1], 0
    s_load_dwordx4 s[8:11], s[0:1], 32
    s_load_dwordx2 s[12:13], s[0:1], 48
    s_load_dwordx2 s[14:15], s[0:1], 80
    v_lshrrev_b32 v1, 6, v0
    v_and_b32 v2, 63, v0
    v_readfirstlane_b32 s3, v1
    s_mov_b32 s60, 0
    s_and_b32 s32, s2, 7
    s_lshr_b32 s33, s2, 3
    s_and_b32 s34, s33, 3
    s_lshr_b32 s35, s33, 2
    v_lshlrev_b32 v1, 4, v2
    s_cmp_ge_u32 s3, 8
    s_cselect_b32 s36, 0, 1
    v_mov_b32 v3, s36
    v_lshlrev_b32 v4, 2, v0
    v_add_u32 v4, {PA_B}, v4
    ds_write_b32 v4, v3
    s_cbranch_scc1 K2_GEMM
    """)
    Q, KF_, VF_, S_, P_, O_ = 8, [12, 16], [20, 28], [36, 52], 68, 76
    vKa, vKn, vPr, vPw, vPv, vT = 3, 4, 5, 6, 7, 92
    a(f"""
    s_lshl_b32 s36, s32, 2
    s_add_u32 s36, s36, s34
    s_lshl_b32 s37, s35, 3
    s_add_u32 s37, s37, s3
    s_lshl_b32 s38, s36, 16
    s_lshl_b32 s39, s37, 10
    s_add_u32 s39, s39, s38
    s_lshl_b32 s40, s3, 10
    s_add_u32 s41, s40, {WS_KF:#x}
    s_add_u32 s42, s40, {WS_VF - 4096:#x}
    s_cmp_lt_u32 s3, 4
    s_cselect_b32 s41, s41, s42
    s_add_u32 s41, s41, s38
    s_waitcnt lgkmcnt(0)
    """)
    mk_srd(a, SWS, 14, WS_SIZE)
    a(f"buffer_load_dwordx4 {vr(Q)}, v1, {sr(SWS)}, s39 offen")
    for s in range(4):
        a(f"""
        s_add_u32 m0, s40, {KV_B + s*8192}
        buffer_load_dwordx4 v1, {sr(SWS)}, s41 offen lds
        s_add_u32 s41, s41, 4096
        """)
    a(f"""
    s_setprio {prio}
    v_and_b32 v{vPr}, 7, v2
    v_mul_u32_u24 v{vPr}, 0x104, v{vPr}
    v_add_u32 v{vPr}, {PA_B}, v{vPr}
    v_lshlrev_b32 v{vPw}, 2, v0
    v_add_u32 v{vPw}, {PA_B}, v{vPw}
    v_mov_b32 v{vKa}, v1
    v_add_u32 v{vKn}, 0x2000, v1
    s_mov_b32 s44, 0x0000ffff
    s_mov_b32 s45, 0x0000ffff
    s_mov_b32 s46, 0
    s_mov_b32 s47, 0x2000
    s_mov_b32 s48, 0x8000
    v_mov_b32 v{vPv}, 0
    """)
    for r in range(16):
        a(f"v_mov_b32 v{VF_[0]+r}, 0x3f803f80")
    for r in range(16):
        a(f"v_mov_b32 v{O_+r}, 0")
    a(f"""
    s_waitcnt vmcnt(1) lgkmcnt(0)
    s_barrier
    """)
    stamp(a, 1)
    if PROF[0]:
        a("s_memtime s[76:77]")
    if opts.get("noatt"):
        a("s_endpgm")
    a(f"""
    ds_read_b128 {vr(KF_[0])}, v{vKa}
    ds_read_b128 {vr(KF_[1])}, v{vKa} offset:1024
    s_mov_b64 exec, s[44:45]
    ds_read_b128 {vr(VF_[0])}, v{vKa} offset:4096
    ds_read_b128 {vr(VF_[0]+4)}, v{vKa} offset:4352
    s_mov_b64 exec, -1
    s_waitcnt lgkmcnt(3)
    {MFMA} {vr(S_[0],16)}, {vr(KF_[0])}, {vr(Q)}, 0
    K2_ALOOP:
    """)

    def tile(t):
        cur, nxt = t & 1, (t + 1) & 1
        a("s_waitcnt lgkmcnt(0)")
        if t == 0:
            a(f"""
            v_cmp_gt_u32 vcc, s46, v{vPv}
            s_cbranch_vccnz K2_ASLOW
            K2_AOK:
            """)
        a(f"{MFMA} {vr(S_[nxt],16)}, {vr(KF_[nxt])}, {vr(Q)}, 0")
        kt, vt = t + 2, t + 1
        ka = vKa if kt < 4 else vKn
        va = vKa if vt < 4 else vKn
        a(f"""
        ds_read_b128 {vr(KF_[cur])}, v{ka} offset:{(kt & 3)*1024}
        s_mov_b64 exec, s[44:45]
        ds_read_b128 {vr(VF_[nxt])}, v{va} offset:{4096 + (vt & 3)*1024}
        ds_read_b128 {vr(VF_[nxt]+4)}, v{va} offset:{4096 + (vt & 3)*1024 + 256}
        s_mov_b64 exec, -1
        """)
        if t == 0:
            a(f"""
            s_add_u32 m0, s40, s48
            s_add_u32 s48, s48, 0x2000
            buffer_load_dwordx4 v1, {sr(SWS)}, s41 offen lds
            s_add_u32 s41, s41, 4096
            s_cmp_eq_u32 s48, 0xc000
            s_cselect_b32 s48, 0, s48
            """)
        if t == 3:
            a(f"ds_read_b32 v{vPv}, v{vPr}")
        S = S_[cur]
        for half in range(2):
            for r in range(8):
                a(f"v_exp_f32 v{S+8*half+r}, v{S+8*half+r}")
            for r in range(4):
                a(f"v_cvt_pk_bf16_f32 v{P_+4*half+r}, v{S+8*half+2*r}, v{S+8*half+2*r+1}")
            a(f"{MFMA} {vr(O_,16)}, {vr(VF_[cur]+4*half)}, {vr(P_+4*half)}, {vr(O_,16)}")

    for t in range(4):
        tile(t)
    a(f"""
    s_waitcnt vmcnt(1)
    v_mov_b32 v{vT}, s46
    v_add_u32 v{vT}, 2, v{vT}
    ds_write_b32 v{vPw}, v{vT}
    v_mov_b32 v{vKa}, v{vKn}
    s_add_u32 s47, s47, 0x2000
    s_cmp_eq_u32 s47, 0xc000
    s_cselect_b32 s47, 0, s47
    v_add_u32 v{vKn}, s47, v1
    s_add_u32 s46, s46, 1
    s_cmp_lt_u32 s46, 16
    s_cbranch_scc1 K2_ALOOP
    """)
    stamp(a, 2)
    if PROF[0]:
        a("s_memtime s[78:79]")
    a(f"""
    s_setprio 0
    s_lshl_b32 s39, s37, 15
    s_lshl_b32 s42, s36, 10
    s_add_u32 s39, s39, s42
    s_add_u32 s39, s39, {WS_OF:#x}
    s_mov_b32 s42, 0x21800000
    s_mov_b32 s43, 0x5d800000
    v_mov_b32 v{vT}, 0x207
    v_cmp_nge_f32 vcc, v{O_+8}, s42
    s_mov_b64 s[50:51], vcc
    v_cmp_nle_f32 vcc, v{O_+8}, s43
    s_or_b64 s[50:51], s[50:51], vcc
    """)
    for r in range(8):
        a(f"""
        v_cmp_class_f32 vcc, v{O_+r}, v{vT}
        s_or_b64 s[50:51], s[50:51], vcc
        """)
    if opts.get("forcefb"):
        a("s_mov_b64 s[50:51], -1")
    a(f"""
    s_cmp_lg_u64 s[50:51], 0
    s_cbranch_scc1 K2_AFB
    K2_AFIN:
    v_rcp_f32 v{vT}, v{O_+8}
    """)
    for r in range(8):
        a(f"v_mul_f32 v{O_+r}, v{O_+r}, v{vT}")
    for r in range(4):
        a(f"v_cvt_pk_bf16_f32 v{P_+r}, v{O_+2*r}, v{O_+2*r+1}")
    a(f"""
    buffer_store_dwordx4 {vr(P_)}, v1, {sr(SWS)}, s39 offen
    """)
    if PROF[0]:
        a("s_waitcnt vmcnt(0)")
        for i in range(3, 6):
            stamp(a, i)
        prof_out(a, 1, SWS, 3)
    a(f"""
    s_endpgm
    K2_ASLOW:
    {SAFE}
    s_sleep 1
    ds_read_b32 v{vPv}, v{vPr}
    s_waitcnt lgkmcnt(0)
    v_cmp_gt_u32 vcc, s46, v{vPv}
    s_cbranch_vccnz K2_ASLOW
    s_branch K2_AOK
    """)
    C_ = 96
    a(f"""
    K2_AFB:
    s_waitcnt vmcnt(0) lgkmcnt(0)
    s_add_u32 s41, s38, {WS_KF:#x}
    s_mov_b32 s46, 0
    v_mov_b32 v{vT}, 0xff800000
    K2_AFB1:
    buffer_load_dwordx4 {vr(KF_[0])}, v1, {sr(SWS)}, s41 offen
    s_add_u32 s41, s41, 1024
    s_waitcnt vmcnt(0)
    {MFMA} {vr(S_[0],16)}, {vr(KF_[0])}, {vr(Q)}, 0
    """)
    for r in range(8):
        a(f"v_max3_f32 v{vT}, v{S_[0]+2*r}, v{S_[0]+2*r+1}, v{vT}")
    a(f"""
    s_add_u32 s46, s46, 1
    s_cmp_lt_u32 s46, 64
    s_cbranch_scc1 K2_AFB1
    v_mov_b32 v{vT+1}, v{vT}
    v_permlane32_swap_b32 v{vT}, v{vT+1}
    v_max_f32 v{vT}, v{vT}, v{vT+1}
    """)
    for r in range(16):
        a(f"v_mul_f32 v{C_+r}, -1.0, v{vT}")
    for r in range(16):
        a(f"v_mov_b32 v{O_+r}, 0")
    a(f"""
    s_add_u32 s41, s38, {WS_KF:#x}
    s_add_u32 s42, s38, {WS_VF:#x}
    s_mov_b32 s46, 0
    K2_AFB2:
    buffer_load_dwordx4 {vr(KF_[0])}, v1, {sr(SWS)}, s41 offen
    s_mov_b64 exec, s[44:45]
    buffer_load_dwordx4 {vr(VF_[0])}, v1, {sr(SWS)}, s42 offen
    buffer_load_dwordx4 {vr(VF_[0]+4)}, v1, {sr(SWS)}, s42 offen offset:256
    s_mov_b64 exec, -1
    s_add_u32 s41, s41, 1024
    s_add_u32 s42, s42, 1024
    s_waitcnt vmcnt(0)
    {MFMA} {vr(S_[0],16)}, {vr(KF_[0])}, {vr(Q)}, {vr(C_,16)}
    """)
    for r in range(16):
        a(f"v_exp_f32 v{S_[0]+r}, v{S_[0]+r}")
    for r in range(8):
        a(f"v_cvt_pk_bf16_f32 v{P_+r}, v{S_[0]+2*r}, v{S_[0]+2*r+1}")
    a(f"""
    {MFMA} {vr(O_,16)}, {vr(VF_[0])}, {vr(P_)}, {vr(O_,16)}
    {MFMA} {vr(O_,16)}, {vr(VF_[0]+4)}, {vr(P_+4)}, {vr(O_,16)}
    s_add_u32 s46, s46, 1
    s_cmp_lt_u32 s46, 64
    s_nop 7
    s_nop 7
    s_cbranch_scc1 K2_AFB2
    s_branch K2_AFIN
    """)

    vXo, vWo, vXb, vXa, vXa2, vWb, vWc, vWn, vPr, vPw, vPv, vT, vT2 = 3, 4, 8, 9, 10, 11, 12, 13, 14, 15, 16, 17, 18
    XF, WF, ACC = [20, 24], 28, 56
    a(f"""
    K2_GEMM:
    s_setprio {gprio}
    s_sub_u32 s3, s3, 8
    s_lshr_b32 s36, s32, 1
    s_lshl_b32 s36, s36, 2
    s_add_u32 s36, s36, s34
    s_and_b32 s37, s32, 1
    s_lshl_b32 s37, s37, 3
    s_add_u32 s37, s37, s35
    """)
    a(f"""
    v_lshrrev_b32 v{vT}, 2, v2
    v_and_b32 v{vXo}, 3, v2
    v_lshrrev_b32 v{vT2}, 4, v2
    v_xor_b32 v{vXo}, v{vXo}, v{vT2}
    v_lshlrev_b32 v{vXo}, 4, v{vXo}
    v_lshl_add_u32 v{vXo}, v{vT}, 10, v{vXo}
    s_lshl_b32 s38, s36, 17
    s_lshl_b32 s39, s3, 15
    s_add_u32 s38, s38, s39
    s_add_u32 s39, s38, 0x4000
    s_and_b32 s40, s3, 1
    s_mul_i32 s41, s40, {16*3584}
    s_mul_i32 s42, s37, 224
    s_add_u32 s41, s41, s42
    """)
    for i in range(4):
        a(f"""
        v_add_u32 v{vT}, {64*i}, v2
        v_mul_u32_u24 v{vT2}, 0x4925, v{vT}
        v_lshrrev_b32 v{vT2}, 18, v{vT2}
        v_mul_u32_u24 v{vWo+i}, 14, v{vT2}
        v_sub_u32 v{vT}, v{vT}, v{vWo+i}
        v_mul_u32_u24 v{vT2}, 0xe00, v{vT2}
        v_lshl_add_u32 v{vT2}, v{vT}, 4, v{vT2}
        v_add_u32 v{vWo+i}, s41, v{vT2}
        """)
    a(f"""
    s_lshr_b32 s42, s3, 1
    s_mul_i32 s42, s42, {W_UP}
    s_mul_i32 s43, s40, 3584
    s_add_u32 s42, s42, s43
    s_add_u32 s42, s42, {W_B}
    s_lshl_b32 s43, s3, 13
    s_add_u32 s43, s43, {X_B}
    s_mov_b32 s44, 0
    s_mov_b32 s45, 0
    s_mov_b32 s46, 0
    s_waitcnt lgkmcnt(0)
    s_cmp_lt_u32 s3, 2
    s_cselect_b32 s8, s8, s10
    s_cselect_b32 s9, s9, s11
    """)
    mk_srd(a, SWS, 14, WS_SIZE)
    mk_srd(a, SX, 4, 0x200000)
    mk_srd(a, SWT, 8, 512 * 3584)
    mk_srd(a, SWD, 12, 1792 * 1024)

    def dma_w():
        a("s_add_u32 s47, s42, s45")
        for i in range(4):
            if i == 3:
                a("s_mov_b32 exec_hi, 0")
            a(f"""
            s_add_u32 m0, s47, {i*1024}
            buffer_load_dwordx4 v{vWo+i}, {sr(SWT)}, s44 offen lds
            """)
        a(f"""
        s_mov_b32 exec_hi, -1
        s_add_u32 s44, s44, {32*3584}
        s_add_u32 s45, s45, {W_SLOT}
        s_cmp_eq_u32 s45, {5*W_SLOT}
        s_cselect_b32 s45, 0, s45
        """)

    def dma_x():
        a(f"""
        s_add_u32 m0, s43, s46
        s_add_u32 s47, s43, s46
        buffer_load_dwordx4 v{vXo}, {sr(SX)}, s38 offen lds
        s_add_u32 m0, s47, 1024
        s_add_u32 s38, s38, 64
        buffer_load_dwordx4 v{vXo}, {sr(SX)}, s39 offen lds
        s_add_u32 s39, s39, 64
        s_add_u32 s46, s46, 2048
        s_and_b32 s46, s46, 0x1fff
        """)

    dma_w()
    for m in range(3):
        dma_w()
        dma_x()
    a(f"""
    v_and_b32 v{vT}, 31, v2
    v_lshrrev_b32 v{vT2}, 5, v2
    v_bfe_u32 v{vXb}, v2, 2, 2
    v_xor_b32 v{vXb}, v{vXb}, v{vT2}
    v_lshlrev_b32 v{vXb}, 4, v{vXb}
    v_lshl_add_u32 v{vXb}, v{vT}, 6, v{vXb}
    v_add_u32 v{vXb}, s43, v{vXb}
    v_bfe_u32 v{vT}, v2, 2, 2
    v_lshl_add_u32 v{vT}, v{vT2}, 3, v{vT}
    v_mul_u32_u24 v{vWb}, 0xe0, v{vT}
    v_bfe_u32 v{vT}, v2, 4, 1
    v_mul_u32_u24 v{vT}, {W_UP}, v{vT}
    v_add_u32 v{vWb}, v{vWb}, v{vT}
    v_and_b32 v{vT}, 3, v2
    v_lshl_add_u32 v{vWb}, v{vT}, 3, v{vWb}
    v_add_u32 v{vWb}, {W_B}, v{vWb}
    v_mov_b32 v{vWc}, v{vWb}
    v_mov_b32 v{vXa}, v{vXb}
    v_xor_b32 v{vXa2}, 32, v{vXb}
    v_and_b32 v{vPr}, 3, v2
    v_mul_u32_u24 v{vPr}, 0x104, v{vPr}
    v_add_u32 v{vPr}, {PG_B}, v{vPr}
    v_lshlrev_b32 v{vPw}, 2, v0
    v_add_u32 v{vPw}, {PA_B}, v{vPw}
    s_mov_b32 s48, 0
    s_mov_b32 s49, {W_SLOT}
    s_mov_b32 s50, 2048
    """)
    for r in range(112):
        a(f"v_mov_b32 v{ACC+r}, 0")

    def wread(j, va, ksp):
        for rd in range(2):
            a(f"ds_read_b64_tr_b16 {vr(WF+4*j+2*rd, 2)}, v{va} offset:{(16*ksp + 4*rd)*224 + j*32}")

    a(f"""
    s_waitcnt vmcnt(12) lgkmcnt(0)
    s_barrier
    """)
    if opts.get("nogemm"):
        a("s_endpgm")
    stamp(a, 1)
    a(f"""
    ds_read_b128 {vr(XF[0])}, v{vXa}
    """)
    for j in range(7):
        wread(j, vWc, 0)
    a(f"""
    K2_GLOOP:
    ds_read_b128 {vr(XF[1])}, v{vXa2}
    """)
    for j in range(7):
        a(f"""
        s_waitcnt lgkmcnt(13)
        {MFMA} {vr(ACC+16*j,16)}, {vr(WF+4*j)}, {vr(XF[0])}, {vr(ACC+16*j,16)}
        """)
        wread(j, vWc, 1)
        if j == 4:
            a(f"ds_read_b32 v{vPv}, v{vPr}")
        GAP()
    a(f"""
    s_waitcnt lgkmcnt(4)
    v_cmp_gt_u32 vcc, s48, v{vPv}
    s_cbranch_vccnz K2_GSLOW
    K2_GOK:
    s_cmp_lt_u32 s48, 12
    s_cbranch_scc0 K2_GTAIL
    s_waitcnt vmcnt(6)
    """)
    dma_w()
    a("K2_GT2:")
    dma_x()
    a(f"""
    v_add_u32 v{vWn}, s49, v{vWb}
    v_add_u32 v{vXa}, s50, v{vXb}
    s_add_u32 s49, s49, {W_SLOT}
    s_cmp_eq_u32 s49, {5*W_SLOT}
    s_cselect_b32 s49, 0, s49
    s_add_u32 s50, s50, 2048
    s_and_b32 s50, s50, 0x1fff
    ds_read_b128 {vr(XF[0])}, v{vXa}
    """)
    for j in range(7):
        a(f"""
        s_waitcnt lgkmcnt(13)
        {MFMA} {vr(ACC+16*j,16)}, {vr(WF+4*j)}, {vr(XF[1])}, {vr(ACC+16*j,16)}
        """)
        wread(j, vWn, 0)
        GAP()
    a(f"""
    s_add_u32 s48, s48, 1
    v_mov_b32 v{vT}, s48
    v_xor_b32 v{vXa2}, 32, v{vXa}
    v_mov_b32 v{vWc}, v{vWn}
    ds_write_b32 v{vPw}, v{vT}
    s_cmp_lt_u32 s48, 16
    s_cbranch_scc1 K2_GLOOP
    """)
    stamp(a, 2)
    a(f"""
    s_lshl_b32 s38, s36, 2
    s_add_u32 s38, s38, s3
    s_mul_i32 s39, s38, 112
    s_mul_i32 s40, s37, 7
    s_add_u32 s39, s39, s40
    s_lshl_b32 s39, s39, 10
    s_add_u32 s39, s39, {WS_HF:#x}
    s_add_u32 s40, s39, 4096
    s_waitcnt lgkmcnt(0)
    """)
    for j in range(7):
        A = ACC + 16 * j
        for r in range(4):
            a(f"v_pk_mul_f32 {vr(A+2*r,2)}, {vr(A+2*r,2)}, {vr(A+8+2*r,2)}")
        for r in range(4):
            a(f"v_cvt_pk_bf16_f32 v{WF+4*j+r}, v{A+2*r}, v{A+2*r+1}")
        so, off = (39, j * 1024) if j < 4 else (40, (j - 4) * 1024)
        a(f"buffer_store_dwordx4 {vr(WF+4*j)}, v1, {sr(SWS)}, s{so} offen offset:{off} sc1")
    if opts.get("nodown"):
        a("s_endpgm")
    vA0, vA1, vO = 8, 9, 10
    HB, WD2, AC2 = 20, 76, 92
    a(f"""
    s_lshr_b32 s40, s38, 1
    s_lshl_b32 s40, s40, 2
    s_lshr_b32 s41, s37, 2
    s_add_u32 s40, s40, s41
    s_lshl_b32 s40, s40, 7
    s_add_u32 s40, s40, {WS_SYNC:#x}
    s_lshl_b32 s36, s32, 2
    s_add_u32 s36, s36, s34
    s_lshl_b32 s41, s36, 2
    s_add_u32 s41, s41, s3
    s_lshl_b32 s41, s41, 7
    s_add_u32 s41, s41, {WS_SYNC:#x}
    s_lshl_b32 s42, s35, 7
    s_mul_i32 s43, s3, {DN_REG}
    s_add_u32 s43, s43, {W_B}
    s_mul_i32 s44, s3, {28*16*1024}
    s_add_u32 s45, s44, 8192
    s_mul_i32 s46, s36, {224*1024}
    s_mul_i32 s47, s3, {28*1024}
    s_add_u32 s46, s46, s47
    s_add_u32 s46, s46, {WS_HF:#x}
    s_add_u32 s47, s46, {112*1024}
    """)
    gemm_tile_addr(a, 2, vA0, vA1, vT, vT2, 43)
    gemm_dma_off(a, 2, vO, vT, vT2, 42)
    a(f"""
    v_mov_b32 v{vT}, 1
    v_mov_b32 v{vT2}, 0
    s_waitcnt vmcnt(0)
    """)
    stamp(a, 3)
    a(f"""
    s_mov_b64 exec, 1
    buffer_atomic_add v{vT}, v{vT2}, {sr(SWS)}, s40 offen
    s_mov_b64 exec, -1
    K2_DW1:
    {SAFE}
    s_sleep 1
    ds_read_b32 v{vPv}, v{vPr}
    s_waitcnt lgkmcnt(0)
    v_cmp_gt_u32 vcc, 16, v{vPv}
    s_cbranch_vccnz K2_DW1
    s_mov_b32 s48, s44
    s_mov_b32 s49, s45
    """)
    for i in range(7):
        a(f"""
        s_add_u32 m0, s43, {i*2048}
        buffer_load_dwordx4 v{vO}, {sr(SWD)}, s48 offen lds
        s_add_u32 m0, s43, {i*2048 + 1024}
        s_add_u32 s48, s48, 0x4000
        buffer_load_dwordx4 v{vO}, {sr(SWD)}, s49 offen lds
        s_add_u32 s49, s49, 0x4000
        """)
    for r in range(64):
        a(f"v_mov_b32 v{AC2+r}, 0")
    a(f"""
    s_mov_b32 s50, {spin}
    K2_DPOLL:
    s_cmp_eq_u32 s50, 0
    s_cbranch_scc1 K2_DABORT
    s_sub_u32 s50, s50, 1
    buffer_load_dword v{vT}, v{vT2}, {sr(SWS)}, s41 offen sc1
    s_waitcnt vmcnt(0)
    v_readfirstlane_b32 s51, v{vT}
    s_cmp_ge_u32 s51, 8
    s_cbranch_scc1 K2_DGO
    s_sleep 4
    s_branch K2_DPOLL
    K2_DGO:
    """)
    stamp(a, 4)

    def dn_issue(i):
        a(f"""
        buffer_load_dwordx4 {vr(HB+8*i)}, v1, {sr(SWS)}, s46 offen sc1
        buffer_load_dwordx4 {vr(HB+8*i+4)}, v1, {sr(SWS)}, s47 offen sc1
        s_add_u32 m0, s43, {i*2048}
        s_add_u32 s46, s46, 1024
        buffer_load_dwordx4 v{vO}, {sr(SWD)}, s44 offen lds
        s_add_u32 m0, s43, {i*2048 + 1024}
        s_add_u32 s47, s47, 1024
        buffer_load_dwordx4 v{vO}, {sr(SWD)}, s45 offen lds
        s_add_u32 s44, s44, 0x4000
        s_add_u32 s45, s45, 0x4000
        """)

    for i in range(7):
        dn_issue(i)
    a("""
    s_mov_b32 s50, 0
    K2_DLOOP:
    """)
    for i in range(7):
        w = WD2 + 8 * (i & 1)
        a(f"""
        s_waitcnt vmcnt(24)
        ds_read_b64_tr_b16 {vr(w,2)}, v{vA0} offset:{i*2048}
        ds_read_b64_tr_b16 {vr(w+2,2)}, v{vA0} offset:{i*2048+1024}
        ds_read_b64_tr_b16 {vr(w+4,2)}, v{vA1} offset:{i*2048}
        ds_read_b64_tr_b16 {vr(w+6,2)}, v{vA1} offset:{i*2048+1024}
        s_waitcnt lgkmcnt(2)
        {MFMA} {vr(AC2,16)}, {vr(w)}, {vr(HB+8*i)}, {vr(AC2,16)}
        """)
        GAP()
        a(f"{MFMA} {vr(AC2+16,16)}, {vr(w)}, {vr(HB+8*i+4)}, {vr(AC2+16,16)}")
        GAP()
        a(f"""
        s_waitcnt lgkmcnt(0)
        {MFMA} {vr(AC2+32,16)}, {vr(w+4)}, {vr(HB+8*i)}, {vr(AC2+32,16)}
        """)
        GAP()
        a(f"{MFMA} {vr(AC2+48,16)}, {vr(w+4)}, {vr(HB+8*i+4)}, {vr(AC2+48,16)}")
        dn_issue(i)
        GAP()
    a(f"""
    s_add_u32 s50, s50, 1
    s_cmp_lt_u32 s50, 4
    s_cbranch_scc1 K2_DLOOP
    """)
    stamp(a, 5)
    a(f"""
    s_waitcnt vmcnt(0)
    v_add_u32 v{vA0}, s43, v1
    v_add_u32 v{vA1}, {W_B}, v1
    s_lshl_b32 s44, s3, 12
    v_add_u32 v{vA1}, s44, v{vA1}
    """)
    for q in range(4):
        for i in range(4):
            a(f"ds_write_b128 v{vA0}, {vr(AC2+16*q+4*i)} offset:{q*4096 + i*1024}")
    a(f"""
    v_mov_b32 v{vT}, 17
    s_waitcnt lgkmcnt(0)
    ds_write_b32 v{vPw}, v{vT}
    K2_DW2:
    {SAFE}
    s_sleep 1
    ds_read_b32 v{vPv}, v{vPr}
    s_waitcnt lgkmcnt(0)
    v_cmp_gt_u32 vcc, 17, v{vPv}
    s_cbranch_vccnz K2_DW2
    v_cmp_lt_u32 vcc, 17, v{vPv}
    s_cbranch_vccnz K2_END
    """)
    for g in range(4):
        for i in range(4):
            a(f"ds_read_b128 {vr(AC2+16*g+4*i)}, v{vA1} offset:{g*DN_REG + i*1024}")
    a(f"""
    s_lshl_b32 s44, s36, 3
    s_add_u32 s44, s44, s35
    s_lshl_b32 s45, s44, 2
    s_add_u32 s45, s45, s3
    s_lshl_b32 s46, s45, 11
    s_add_u32 s46, s46, {WS_BB:#x}
    s_lshl_b32 s45, s45, 2
    s_add_u32 s45, s45, {WS_SYNC + 16384:#x}
    s_waitcnt lgkmcnt(8)
    """)
    for r in range(8):
        a(f"v_pk_add_f32 {vr(AC2+2*r,2)}, {vr(AC2+2*r,2)}, {vr(AC2+16+2*r,2)}")
    a("s_waitcnt lgkmcnt(0)")
    for r in range(8):
        a(f"v_pk_add_f32 {vr(AC2+32+2*r,2)}, {vr(AC2+32+2*r,2)}, {vr(AC2+48+2*r,2)}")
    for r in range(8):
        a(f"v_pk_add_f32 {vr(AC2+2*r,2)}, {vr(AC2+2*r,2)}, {vr(AC2+32+2*r,2)}")
    for r in range(8):
        a(f"v_cvt_pk_bf16_f32 v{HB+r}, v{AC2+2*r}, v{AC2+2*r+1}")
    a(f"""
    buffer_store_dwordx4 {vr(HB)}, v1, {sr(SWS)}, s46 offen
    buffer_store_dwordx4 {vr(HB+4)}, v1, {sr(SWS)}, s46 offen offset:1024
    v_mov_b32 v{vT}, 1
    s_mov_b64 exec, 1
    buffer_store_dword v{vT}, v{vT2}, {sr(SWS)}, s45 offen
    """)
    if PROF[0]:
        stamp(a, 6)
        a("s_waitcnt vmcnt(0)")
        stamp(a, 7)
        a("s_add_u32 s3, s3, 8")
        prof_out(a, 1, SWS, 3)
    a(f"""
    K2_END:
    s_endpgm
    K2_DABORT:
    v_mov_b32 v{vT}, 0x1000
    s_waitcnt vmcnt(0)
    ds_write_b32 v{vPw}, v{vT}
    s_waitcnt lgkmcnt(0)
    s_endpgm
    K2_GSLOW:
    {SAFE}
    s_sleep 1
    ds_read_b32 v{vPv}, v{vPr}
    s_waitcnt lgkmcnt(0)
    v_cmp_gt_u32 vcc, s48, v{vPv}
    s_cbranch_vccnz K2_GSLOW
    s_branch K2_GOK
    K2_GTAIL:
    s_waitcnt vmcnt(2)
    s_branch K2_GT2
    """)


def gen_k3(a, opts):
    a.raw(".globl k3_kernel\n.p2align 8\n.type k3_kernel,@function\nk3_kernel:")
    SWS, SWO, SOUT, SWD = 16, 20, 24, 28
    vA0, vA1, vO, vT, vT2, vG, vOa = 3, 4, 5, 6, 7, 8, 9
    BB_, W2, OB, AC, AB = 12, 20, 36, 100, 164
    a(f"""
    s_cmp_ge_u32 s2, 0x100
    s_cbranch_scc1 K3_END
    """)
    stamp(a, 0)
    a(f"""
    s_load_dwordx2 s[4:5], s[0:1], 16
    s_load_dwordx2 s[6:7], s[0:1], 48
    s_load_dwordx2 s[8:9], s[0:1], 64
    s_load_dwordx2 s[14:15], s[0:1], 80
    v_lshrrev_b32 v1, 6, v0
    v_and_b32 v2, 63, v0
    v_readfirstlane_b32 s3, v1
    s_and_b32 s32, s2, 7
    s_lshr_b32 s33, s2, 3
    s_and_b32 s34, s33, 3
    s_lshr_b32 s35, s33, 2
    s_lshl_b32 s36, s32, 2
    s_add_u32 s36, s36, s34
    v_lshlrev_b32 v1, 4, v2
    s_lshl_b32 s42, s35, 7
    s_lshl_b32 s43, s3, 14
    s_lshl_b32 s44, s3, 17
    s_add_u32 s45, s44, 8192
    s_lshl_b32 s46, s36, 16
    s_lshl_b32 s47, s3, 13
    s_add_u32 s46, s46, s47
    s_add_u32 s46, s46, {WS_OF:#x}
    s_add_u32 s47, s46, 0x8000
    s_lshl_b32 s37, s36, 3
    s_add_u32 s37, s37, s35
    s_lshl_b32 s38, s37, 4
    s_add_u32 s38, s38, {WS_SYNC + 16384:#x}
    s_lshl_b32 s39, s37, 2
    s_add_u32 s39, s39, s3
    s_lshl_b32 s39, s39, 11
    s_add_u32 s39, s39, {WS_BB:#x}
    """)
    gemm_dma_off(a, 2, vO, vT, vT2, 42)
    a("s_waitcnt lgkmcnt(0)")
    mk_srd(a, SWS, 14, WS_SIZE)
    mk_srd(a, SWO, 4, 512 * 1024)
    a("s_load_dwordx4 s[52:55], s[14:15], s38")
    fused = opts.get("fused")
    vF = 10
    if fused:
        a(f"""
        v_and_b32 v{vF}, 15, v2
        v_lshlrev_b32 v{vF}, 2, v{vF}
        s_lshl_b32 s56, s36, 8
        s_lshl_b32 s57, s3, 6
        s_add_u32 s56, s56, s57
        s_add_u32 s56, s56, {WS_SYNC + 20480:#x}
        s_mov_b32 s58, s46
        buffer_load_dword v{vF}, v{vF}, {sr(SWS)}, s56 offen
        """)
    for i in range(8):
        a(f"""
        s_add_u32 m0, s43, {i*2048}
        buffer_load_dwordx4 {vr(OB+8*i)}, v1, {sr(SWS)}, s46 offen offset:{(i&3)*1024}
        buffer_load_dwordx4 v{vO}, {sr(SWO)}, s44 offen lds
        s_add_u32 m0, s43, {i*2048 + 1024}
        buffer_load_dwordx4 {vr(OB+8*i+4)}, v1, {sr(SWS)}, s47 offen offset:{(i&3)*1024}
        buffer_load_dwordx4 v{vO}, {sr(SWO)}, s45 offen lds
        s_add_u32 s44, s44, 0x4000
        s_add_u32 s45, s45, 0x4000
        """)
        if i == 3:
            a("s_add_u32 s46, s46, 4096\n s_add_u32 s47, s47, 4096")
    a(f"""
    buffer_load_dwordx4 {vr(BB_)}, v1, {sr(SWS)}, s39 offen
    buffer_load_dwordx4 {vr(BB_+4)}, v1, {sr(SWS)}, s39 offen offset:1024
    s_and_b32 s40, s3, 1
    s_lshl_b32 s41, s36, 1
    s_add_u32 s41, s41, s40
    s_lshl_b32 s48, s41, 7
    s_add_u32 s48, s48, {WS_G:#x}
    v_and_b32 v{vT}, 31, v2
    v_lshlrev_b32 v{vT2}, 2, v{vT}
    buffer_load_dword v{vG}, v{vT2}, {sr(SWS)}, s48 offen
    v_lshrrev_b32 v{vOa}, 5, v2
    v_lshlrev_b32 v{vOa}, 4, v{vOa}
    v_lshl_add_u32 v{vOa}, v{vT}, 10, v{vOa}
    s_lshl_b32 s49, s41, 15
    s_add_u32 s49, s49, s42
    s_lshr_b32 s40, s3, 1
    s_lshl_b32 s40, s40, 6
    s_add_u32 s49, s49, s40
    """)
    mk_srd(a, SOUT, 8, 2048 * 1024)
    gemm_tile_addr(a, 2, vA0, vA1, vT, vT2, 43)
    for i in range(8):
        w = W2 + 8 * (i & 1)
        c = [("0" if i == 0 else vr(AC + 16 * q, 16)) for q in range(4)]
        a(f"s_waitcnt vmcnt({3 + 4*(7-i)})")
        if i in (0, 7):
            stamp(a, 1 if i == 0 else 2)
        if i == 0 and fused:
            a(f"""
            v_cmp_ne_u32 vcc, 1, v{vF}
            s_cbranch_vccnz K3_AFB
            K3_AOK:
            """)
        a(f"""
        ds_read_b64_tr_b16 {vr(w,2)}, v{vA0} offset:{i*2048}
        ds_read_b64_tr_b16 {vr(w+2,2)}, v{vA0} offset:{i*2048+1024}
        ds_read_b64_tr_b16 {vr(w+4,2)}, v{vA1} offset:{i*2048}
        ds_read_b64_tr_b16 {vr(w+6,2)}, v{vA1} offset:{i*2048+1024}
        s_waitcnt lgkmcnt(2)
        {MFMA} {vr(AC,16)}, {vr(w)}, {vr(OB+8*i)}, {c[0]}
        {MFMA} {vr(AC+16,16)}, {vr(w)}, {vr(OB+8*i+4)}, {c[1]}
        s_waitcnt lgkmcnt(0)
        {MFMA} {vr(AC+32,16)}, {vr(w+4)}, {vr(OB+8*i)}, {c[2]}
        {MFMA} {vr(AC+48,16)}, {vr(w+4)}, {vr(OB+8*i+4)}, {c[3]}
        """)
    a(f"""
    s_and_b32 s52, s52, s53
    s_and_b32 s54, s54, s55
    s_and_b32 s52, s52, s54
    s_cmp_eq_u32 s52, 1
    s_cbranch_scc0 K3_FB
    K3_RED:
    """)
    stamp(a, 3)
    a(f"""
    v_add_u32 v{vT}, s43, v1
    s_lshl_b32 s44, s3, 12
    v_add_u32 v{vT2}, s44, v1
    """)
    for q in range(4):
        for i in range(4):
            a(f"ds_write_b128 v{vT}, {vr(AC+16*q+4*i)} offset:{q*4096 + i*1024}")
    a("""
    s_waitcnt lgkmcnt(0)
    s_barrier
    """)
    for g in range(4):
        for i in range(4):
            a(f"ds_read_b128 {vr(AC+16*g+4*i)}, v{vT2} offset:{g*16384 + i*1024}")
    a(f"""
    s_waitcnt vmcnt(0)
    v_lshlrev_b32 v{vA0}, 16, v{vG}
    v_and_b32 v{vA1}, 0xffff0000, v{vG}
    """)
    for r in range(8):
        a(f"""
        v_lshlrev_b32 v{OB+2*r}, 16, v{BB_+r}
        v_and_b32 v{OB+2*r+1}, 0xffff0000, v{BB_+r}
        """)
    for r in range(16):
        a(f"v_mul_f32 v{OB+r}, v{OB+r}, v{vA1}")
    a("s_waitcnt lgkmcnt(8)")
    for r in range(8):
        a(f"v_pk_add_f32 {vr(AC+2*r,2)}, {vr(AC+2*r,2)}, {vr(AC+16+2*r,2)}")
    a("s_waitcnt lgkmcnt(0)")
    for r in range(8):
        a(f"v_pk_add_f32 {vr(AC+32+2*r,2)}, {vr(AC+32+2*r,2)}, {vr(AC+48+2*r,2)}")
    for r in range(8):
        a(f"v_pk_add_f32 {vr(AC+2*r,2)}, {vr(AC+2*r,2)}, {vr(AC+32+2*r,2)}")
    for r in range(16):
        a(f"v_fmac_f32 v{OB+r}, v{AC+r}, v{vA0}")
    for r in range(8):
        a(f"v_cvt_pk_bf16_f32 v{BB_+r}, v{OB+2*r}, v{OB+2*r+1}")
    a(f"""
    v_permlane32_swap_b32 v{BB_}, v{BB_+2}
    v_permlane32_swap_b32 v{BB_+1}, v{BB_+3}
    v_permlane32_swap_b32 v{BB_+4}, v{BB_+6}
    v_permlane32_swap_b32 v{BB_+5}, v{BB_+7}
    buffer_store_dwordx4 {vr(BB_)}, v{vOa}, {sr(SOUT)}, s49 offen
    buffer_store_dwordx4 {vr(BB_+4)}, v{vOa}, {sr(SOUT)}, s49 offen offset:32
    """)
    if fused:
        a(f"""
        v_mov_b32 v{vT}, 0
        v_lshlrev_b32 v{vT2}, 2, v0
        s_lshl_b32 s44, s2, 6
        s_add_u32 s44, s44, {WS_SYNC:#x}
        v_cmp_gt_u32 vcc, 16, v0
        s_and_b64 exec, vcc, exec
        s_cbranch_execz K3_NOCLR
        buffer_store_dword v{vT}, v{vT2}, {sr(SWS)}, s44 offen
        K3_NOCLR:
        """)
    if PROF[0]:
        stamp(a, 4)
        a("s_waitcnt vmcnt(0)")
        for i in range(5, 8):
            stamp(a, i)
        prof_out(a, 2, SWS, 3)
    a(f"""
    K3_END:
    s_endpgm
    K3_FB:
    """)
    mk_srd(a, SWD, 6, 1792 * 1024)
    a(f"""
    s_mul_i32 s44, s3, {28*16*1024}
    s_add_u32 s45, s44, 8192
    s_mul_i32 s46, s36, {224*1024}
    s_mul_i32 s47, s3, {28*1024}
    s_add_u32 s46, s46, s47
    s_add_u32 s46, s46, {WS_HF:#x}
    s_add_u32 s47, s46, {112*1024}
    s_lshl_b32 s48, s36, 8
    s_add_u32 s48, s48, {WS_G:#x}
    v_and_b32 v{vT}, 31, v2
    v_lshlrev_b32 v{vT}, 2, v{vT}
    s_waitcnt vmcnt(0)
    buffer_load_dword v{BB_}, v{vT}, {sr(SWS)}, s48 offen
    buffer_load_dword v{BB_+1}, v{vT}, {sr(SWS)}, s48 offen offset:128
    s_mov_b32 s50, 0
    """)
    for r in range(64):
        a(f"v_mov_b32 v{AB+r}, 0")
    a(f"""
    K3_FBL:
    s_mov_b32 m0, s43
    buffer_load_dwordx4 {vr(OB)}, v1, {sr(SWS)}, s46 offen
    buffer_load_dwordx4 v{vO}, {sr(SWD)}, s44 offen lds
    s_add_u32 m0, s43, 1024
    buffer_load_dwordx4 {vr(OB+4)}, v1, {sr(SWS)}, s47 offen
    buffer_load_dwordx4 v{vO}, {sr(SWD)}, s45 offen lds
    s_add_u32 s44, s44, 0x4000
    s_add_u32 s45, s45, 0x4000
    s_add_u32 s46, s46, 1024
    s_add_u32 s47, s47, 1024
    s_waitcnt vmcnt(0)
    ds_read_b64_tr_b16 {vr(W2,2)}, v{vA0}
    ds_read_b64_tr_b16 {vr(W2+2,2)}, v{vA0} offset:1024
    ds_read_b64_tr_b16 {vr(W2+4,2)}, v{vA1}
    ds_read_b64_tr_b16 {vr(W2+6,2)}, v{vA1} offset:1024
    s_waitcnt lgkmcnt(0)
    {MFMA} {vr(AB,16)}, {vr(W2)}, {vr(OB)}, {vr(AB,16)}
    {MFMA} {vr(AB+16,16)}, {vr(W2)}, {vr(OB+4)}, {vr(AB+16,16)}
    {MFMA} {vr(AB+32,16)}, {vr(W2+4)}, {vr(OB)}, {vr(AB+32,16)}
    {MFMA} {vr(AB+48,16)}, {vr(W2+4)}, {vr(OB+4)}, {vr(AB+48,16)}
    s_add_u32 s50, s50, 1
    s_cmp_lt_u32 s50, 28
    s_cbranch_scc1 K3_FBL
    v_lshlrev_b32 v{W2}, 16, v{BB_}
    v_and_b32 v{W2+1}, 0xffff0000, v{BB_}
    v_lshlrev_b32 v{W2+2}, 16, v{BB_+1}
    v_and_b32 v{W2+3}, 0xffff0000, v{BB_+1}
    """)
    for q in range(4):
        ru = q & 1
        for r in range(16):
            a(f"""
            v_mul_f32 v{AC+16*q+r}, v{AC+16*q+r}, v{W2+2*ru}
            v_fmac_f32 v{AC+16*q+r}, v{AB+16*q+r}, v{W2+2*ru+1}
            """)
    for r in range(8):
        a(f"v_mov_b32 v{BB_+r}, 0")
    a(f"""
    v_mov_b32 v{vG}, 0x3f80
    s_branch K3_RED
    """)
    if not fused:
        return
    Q, K_, V_, S_, P_, O_, C_, T_ = 164, 168, 172, 180, 196, 204, 220, 236
    a(f"""
    K3_AFB:
    s_mov_b32 s56, vcc_lo
    s_mov_b32 s57, 0
    s_mov_b32 s60, 0x0000ffff
    s_mov_b32 s61, 0x0000ffff
    s_waitcnt vmcnt(0)
    """)
    for r in range(8):
        a(f"v_mov_b32 v{V_+r}, 0x3f803f80")
    a(f"""
    K3_AFBU:
    s_bitcmp1_b32 s56, s57
    s_cbranch_scc0 K3_AFBN
    s_lshr_b32 s50, s57, 1
    s_lshl_b32 s51, s3, 3
    s_add_u32 s50, s50, s51
    s_and_b32 s51, s57, 1
    s_lshl_b32 s59, s36, 1
    s_add_u32 s51, s51, s59
    s_lshl_b32 s86, s50, 16
    s_lshl_b32 s87, s51, 10
    s_add_u32 s87, s87, s86
    buffer_load_dwordx4 {vr(Q)}, v1, {sr(SWS)}, s87 offen
    s_lshl_b32 s51, s51, 15
    s_lshl_b32 s50, s50, 10
    s_add_u32 s50, s50, s51
    s_add_u32 s50, s50, {WS_OF:#x}
    s_add_u32 s87, s86, {WS_KF:#x}
    s_mov_b32 s59, 0
    v_mov_b32 v{T_}, 0xff800000
    K3_AFB1:
    buffer_load_dwordx4 {vr(K_)}, v1, {sr(SWS)}, s87 offen
    s_add_u32 s87, s87, 1024
    s_waitcnt vmcnt(0)
    {MFMA} {vr(S_,16)}, {vr(K_)}, {vr(Q)}, 0
    """)
    for r in range(8):
        a(f"v_max3_f32 v{T_}, v{S_+2*r}, v{S_+2*r+1}, v{T_}")
    a(f"""
    s_add_u32 s59, s59, 1
    s_cmp_lt_u32 s59, 64
    s_cbranch_scc1 K3_AFB1
    v_mov_b32 v{T_+1}, v{T_}
    v_permlane32_swap_b32 v{T_}, v{T_+1}
    v_max_f32 v{T_}, v{T_}, v{T_+1}
    """)
    for r in range(16):
        a(f"v_mul_f32 v{C_+r}, -1.0, v{T_}")
    for r in range(16):
        a(f"v_mov_b32 v{O_+r}, 0")
    a(f"""
    s_add_u32 s87, s86, {WS_KF:#x}
    s_add_u32 s86, s86, {WS_VF:#x}
    s_mov_b32 s59, 0
    K3_AFB2:
    buffer_load_dwordx4 {vr(K_)}, v1, {sr(SWS)}, s87 offen
    s_mov_b64 exec, s[60:61]
    buffer_load_dwordx4 {vr(V_)}, v1, {sr(SWS)}, s86 offen
    buffer_load_dwordx4 {vr(V_+4)}, v1, {sr(SWS)}, s86 offen offset:256
    s_mov_b64 exec, -1
    s_add_u32 s87, s87, 1024
    s_add_u32 s86, s86, 1024
    s_waitcnt vmcnt(0)
    {MFMA} {vr(S_,16)}, {vr(K_)}, {vr(Q)}, {vr(C_,16)}
    """)
    for r in range(16):
        a(f"v_exp_f32 v{S_+r}, v{S_+r}")
    for r in range(8):
        a(f"v_cvt_pk_bf16_f32 v{P_+r}, v{S_+2*r}, v{S_+2*r+1}")
    a(f"""
    {MFMA} {vr(O_,16)}, {vr(V_)}, {vr(P_)}, {vr(O_,16)}
    {MFMA} {vr(O_,16)}, {vr(V_+4)}, {vr(P_+4)}, {vr(O_,16)}
    s_add_u32 s59, s59, 1
    s_cmp_lt_u32 s59, 64
    s_nop 7
    s_nop 7
    s_cbranch_scc1 K3_AFB2
    v_rcp_f32 v{T_}, v{O_+8}
    """)
    for r in range(8):
        a(f"v_mul_f32 v{O_+r}, v{O_+r}, v{T_}")
    for r in range(4):
        a(f"v_cvt_pk_bf16_f32 v{P_+r}, v{O_+2*r}, v{O_+2*r+1}")
    a(f"""
    buffer_store_dwordx4 {vr(P_)}, v1, {sr(SWS)}, s50 offen sc0 sc1
    K3_AFBN:
    s_add_u32 s57, s57, 1
    s_cmp_lt_u32 s57, 16
    s_cbranch_scc1 K3_AFBU
    s_waitcnt vmcnt(0)
    s_add_u32 s59, s58, 0x8000
    """)
    for i in range(8):
        a(f"""
        buffer_load_dwordx4 {vr(OB+8*i)}, v1, {sr(SWS)}, s58 offen offset:{(i&3)*1024} sc0 sc1
        buffer_load_dwordx4 {vr(OB+8*i+4)}, v1, {sr(SWS)}, s59 offen offset:{(i&3)*1024} sc0 sc1
        """)
        if i == 3:
            a("s_add_u32 s58, s58, 4096\n s_add_u32 s59, s59, 4096")
    a("""
    s_waitcnt vmcnt(0)
    s_branch K3_AOK
    """)
```

```python
import sys, os
sys.path.insert(0, os.path.dirname(os.path.abspath(__file__)))
from asmlib import Asm

WS_QF = 0
WS_KF = 0x200000
WS_VF = 0x400000
WS_HF = 0x800000
WS_OF = 0x1000000
WS_BB = 0x1200000
WS_G = 0x1400000
WS_SYNC = 0x1410000
WS_PROF = 0x1500000
WS_SIZE = 0x1600000
PROF = [0]
QSCALE = 0x3EB8AA3B
LOG2E = 0x3FB8AA3B
MFMA = "v_mfma_f32_32x32x16_bf16"


def vr(a, n=4):
    return f"v[{a}:{a+n-1}]"


def sr(a, n=4):
    return f"s[{a}:{a+n-1}]"


def stamp(a, i):
    if PROF[0]:
        a(f"s_memrealtime s[{64+2*i}:{65+2*i}]")
        if i == 0:
            a("s_memtime s[80:81]")


def prof_out(a, k, srd, swave, n=8):
    if not PROF[0]:
        return
    a("s_memtime s[82:83]")
    a("s_memrealtime s[84:85]")
    a("s_waitcnt lgkmcnt(0)")
    a("s_mov_b64 exec, -1")
    for i in range(12):
        a(f"v_writelane_b32 v1, s{64+2*i}, {i}")
    a(f"""
    v_and_b32 v2, 63, v0
    v_lshlrev_b32 v2, 2, v2
    s_lshl_b32 s62, s2, 4
    s_add_u32 s62, s62, s{swave}
    s_lshl_b32 s62, s62, 6
    s_add_u32 s62, s62, {WS_PROF + k*0x40000:#x}
    s_mov_b64 exec, 0xffff
    buffer_store_dword v1, v2, {sr(srd)}, s62 offen
    """)


def mk_srd(a, dst, lo, size):
    a(f"""
    s_mov_b32 s{dst}, s{lo}
    s_and_b32 s{dst+1}, s{lo+1}, 0xffff
    s_mov_b32 s{dst+2}, {size:#x}
    s_mov_b32 s{dst+3}, 0x00020000
    """)


K1_LDS = 81920 + 5 * 12288


def gen_k1(a):
    a.raw(".globl k1_kernel\n.p2align 8\n.type k1_kernel,@function\nk1_kernel:")
    SX, SW, SG, SWS = 12, 16, 20, 24
    a(f"""
    s_cmp_ge_u32 s2, 0x100
    s_cbranch_scc1 K1_END
    """)
    stamp(a, 0)
    a(f"""
    s_load_dwordx4 s[4:7], s[0:1], 0
    s_load_dwordx2 s[8:9], s[0:1], 56
    s_load_dwordx2 s[10:11], s[0:1], 80
    s_and_b32 s3, s2, 7
    s_lshr_b32 s28, s2, 3
    s_lshr_b32 s29, s3, 1
    s_lshl_b32 s29, s29, 2
    s_and_b32 s30, s28, 3
    s_add_u32 s29, s29, s30
    s_and_b32 s30, s3, 1
    s_lshl_b32 s30, s30, 3
    s_lshr_b32 s31, s28, 2
    s_add_u32 s30, s30, s31
    v_lshrrev_b32 v1, 6, v0
    v_and_b32 v2, 63, v0
    v_readfirstlane_b32 s31, v1
    v_lshlrev_b32 v3, 5, v0
    v_and_b32 v4, 31, v0
    v_lshlrev_b32 v4, 5, v4
    """)
    a(f"""
    v_lshrrev_b32 v5, 3, v2
    v_lshlrev_b32 v5, 10, v5
    v_and_b32 v6, 7, v2
    v_lshrrev_b32 v7, 4, v2
    v_xor_b32 v6, v6, v7
    v_lshl_add_u32 v5, v6, 4, v5
    s_lshl_b32 s32, s31, 15
    v_add_u32 v8, s32, v5
    v_xor_b32 v9, 64, v8
    v_add_u32 v9, 0x2000, v9
    v_add_u32 v10, 0x4000, v8
    v_add_u32 v11, 0x4000, v9
    """)
    a(f"""
    s_mul_i32 s32, s31, 192
    s_lshl_b32 s33, s30, 6
    """)
    for i in range(3):
        a(f"""
        v_add_u32 v5, s32, v2
        v_add_u32 v5, {64*i}, v5
        v_mul_u32_u24 v6, 0xaaab, v5
        v_lshrrev_b32 v6, 19, v6
        v_mul_u32_u24 v7, 12, v6
        v_sub_u32 v7, v5, v7
        v_mul_u32_u24 v6, 0xc00, v6
        v_lshrrev_b32 v5, 2, v7
        v_lshl_add_u32 v6, v5, 10, v6
        v_and_b32 v7, 3, v7
        v_lshl_add_u32 v6, v7, 4, v6
        v_add_u32 v{12+i}, s33, v6
        """)
    a(f"""
    s_lshl_b32 s34, s29, 17
    s_lshl_b32 s35, s30, 13
    s_add_u32 s35, s35, s34
    s_mov_b32 s36, 0
    s_mul_i32 s37, s31, 20480
    s_mul_i32 s38, s31, 3072
    s_waitcnt lgkmcnt(0)
    """)
    stamp(a, 1)
    mk_srd(a, SX, 4, 0x200000)
    mk_srd(a, SW, 6, 0x180000)
    mk_srd(a, SG, 8, 0x400)
    mk_srd(a, SWS, 10, WS_SIZE)
    a(f"""
    buffer_load_dwordx4 v[112:115], v3, {sr(SX)}, s35 offen
    buffer_load_dwordx4 v[116:119], v3, {sr(SX)}, s35 offen offset:16
    buffer_load_dwordx4 v[120:123], v4, {sr(SG)}, 0 offen
    buffer_load_dwordx4 v[124:127], v4, {sr(SG)}, 0 offen offset:16
    """)

    def dma(s):
        slot = s % 5
        for i in range(3):
            a(f"""
            s_add_u32 m0, s38, {81920 + slot*12288 + i*1024}
            buffer_load_dwordx4 v{12+i}, {sr(SW)}, s36 offen lds
            """)
        for i in range(4):
            a(f"""
            s_add_u32 m0, s37, {slot*4096 + i*1024}
            buffer_load_dwordx4 v{8+i}, {sr(SX)}, s34 offen lds
            """)
        a(f"""
        s_add_u32 s34, s34, 128
        s_add_u32 s36, s36, 196608
        """)

    for s in range(5):
        dma(s)
    stamp(a, 2)
    a(f"""
    v_and_b32 v5, 31, v2
    v_lshrrev_b32 v6, 5, v2
    v_lshrrev_b32 v7, 1, v5
    v_and_b32 v7, 7, v7
    v_xor_b32 v7, v7, v6
    v_lshlrev_b32 v7, 4, v7
    v_lshl_add_u32 v7, v5, 7, v7
    v_add_u32 v16, s37, v7
    v_xor_b32 v17, 32, v16
    v_xor_b32 v18, 64, v16
    v_xor_b32 v19, 0x60, v16
    v_bfe_u32 v5, v2, 2, 2
    v_lshl_add_u32 v5, v6, 3, v5
    v_mul_u32_u24 v5, 0xc0, v5
    v_bfe_u32 v7, v2, 4, 1
    v_lshl_add_u32 v5, v7, 5, v5
    v_and_b32 v7, 3, v2
    v_lshl_add_u32 v5, v7, 3, v5
    v_add_u32 v20, 0x14000, v5
    """)
    a("s_waitcnt vmcnt(35)")
    stamp(a, 3)
    a("v_mov_b32 v21, 0")
    for p in range(8):
        xs, ws_ = 112 + p, 120 + p
        a(f"""
        v_lshlrev_b32 v5, 16, v{xs}
        v_and_b32 v6, 0xffff0000, v{xs}
        v_lshlrev_b32 v7, 16, v{ws_}
        v_and_b32 v22, 0xffff0000, v{ws_}
        v_mul_f32 v5, v5, v7
        v_mul_f32 v6, v6, v22
        v_cvt_pk_bf16_f32 v5, v5, v6
        v_lshlrev_b32 v6, 16, v5
        v_and_b32 v5, 0xffff0000, v5
        v_add_f32 v21, v21, v6
        v_add_f32 v21, v21, v5
        """)
    for sh in (1, 2, 4, 8):
        a(f"v_add_f32_dpp v21, v21, v21 row_shr:{sh} row_mask:0xf bank_mask:0xf bound_ctrl:0")
    a("v_add_f32_dpp v21, v21, v21 row_bcast:15 row_mask:0xa bank_mask:0xf")
    a(f"""
    v_cvt_pk_bf16_f32 v21, v21, v21
    v_lshlrev_b32 v21, 16, v21
    v_mul_f32 v21, 0xbfb8aa3b, v21
    v_exp_f32 v21, v21
    v_add_f32 v21, 1.0, v21
    v_rcp_f32 v21, v21
    v_cvt_pk_bf16_f32 v21, v21, v21
    v_lshlrev_b32 v22, 16, v21
    v_sub_f32 v22, 1.0, v22
    v_cvt_pk_bf16_f32 v22, v22, v22
    v_and_b32 v21, 0xffff, v21
    v_lshl_or_b32 v21, v22, 16, v21
    """)
    XF = [24, 28]
    WF = [[32, 36, 40], [44, 48, 52]]
    ACC = [64, 80, 96]

    def reads(slot, ks):
        b = ks & 1
        a(f"ds_read_b128 {vr(XF[b])}, v{16+ks} offset:{slot*4096}")
        for u in range(3):
            for rd in range(2):
                off = slot * 12288 + (16 * ks + 4 * rd) * 192 + u * 64
                a(f"ds_read_b64_tr_b16 {vr(WF[b][u]+2*rd, 2)}, v20 offset:{off}")

    def mfmas(ks, first):
        b = ks & 1
        for u in range(3):
            c = "0" if first else vr(ACC[u], 16)
            if u < 2:
                a(f"{MFMA} {vr(ACC[u],16)}, {vr(WF[b][u])}, {vr(XF[b])}, {c}")
            else:
                a(f"{MFMA} {vr(ACC[u],16)}, {vr(XF[b])}, {vr(WF[b][u])}, {c}")

    waits = [28, 21, 21, 21, 21, 14, 7, 0]
    for s in range(8):
        slot = s % 5
        a(f"s_waitcnt vmcnt({waits[s]})")
        a("s_barrier")
        if s in (0, 4):
            stamp(a, {0: 4, 4: 5}[s])
        reads(slot, 0)
        reads(slot, 1)
        if 1 <= s <= 3:
            dma(s + 4)
        a("s_waitcnt lgkmcnt(7)")
        mfmas(0, s == 0)
        reads(slot, 2)
        a("s_waitcnt lgkmcnt(7)")
        mfmas(1, False)
        reads(slot, 3)
        a("s_waitcnt lgkmcnt(7)")
        mfmas(2, False)
        a("s_waitcnt lgkmcnt(0)")
        mfmas(3, False)
    stamp(a, 6)
    a(f"""
    s_lshl_b32 s32, s29, 2
    s_add_u32 s32, s32, s31
    s_lshl_b32 s33, s30, 17
    s_lshl_b32 s34, s32, 10
    s_add_u32 s33, s33, s34
    s_add_u32 s34, s33, 0x10000
    s_add_u32 s35, s33, {WS_KF:#x}
    s_add_u32 s36, s34, {WS_KF:#x}
    s_add_u32 s37, s33, {WS_VF:#x}
    v_lshlrev_b32 v3, 4, v2
    v_bfe_u32 v5, v2, 4, 1
    v_lshlrev_b32 v5, 16, v5
    v_lshrrev_b32 v6, 5, v2
    v_lshl_add_u32 v5, v6, 9, v5
    v_and_b32 v6, 15, v2
    v_lshl_add_u32 v4, v6, 4, v5
    s_mov_b32 s38, {QSCALE:#x}
    """)
    for r in range(16):
        a(f"v_mul_f32 v{64+r}, s38, v{64+r}")
    for r in range(8):
        a(f"v_cvt_pk_bf16_f32 v{24+r}, v{64+2*r}, v{65+2*r}")
    a(f"""
    buffer_store_dwordx4 v[24:27], v3, {sr(SWS)}, s33 offen
    buffer_store_dwordx4 v[28:31], v3, {sr(SWS)}, s34 offen
    """)
    for r in range(8):
        a(f"v_cvt_pk_bf16_f32 v{32+r}, v{80+2*r}, v{81+2*r}")
    a(f"""
    buffer_store_dwordx4 v[32:35], v3, {sr(SWS)}, s35 offen
    buffer_store_dwordx4 v[36:39], v3, {sr(SWS)}, s36 offen
    """)
    for r in range(8):
        a(f"v_cvt_pk_bf16_f32 v{40+r}, v{96+2*r}, v{97+2*r}")
    a(f"""
    buffer_store_dwordx4 v[40:43], v4, {sr(SWS)}, s37 offen
    buffer_store_dwordx4 v[44:47], v4, {sr(SWS)}, s37 offen offset:256
    """)
    a(f"""
    s_lshl_b32 s32, s29, 9
    s_lshl_b32 s33, s30, 5
    s_add_u32 s32, s32, s33
    s_add_u32 s32, s32, {WS_G:#x}
    v_lshrrev_b32 v5, 5, v0
    v_lshlrev_b32 v5, 2, v5
    s_mov_b32 exec_lo, 0x80000000
    s_mov_b32 exec_hi, 0x80000000
    buffer_store_dword v21, v5, {sr(SWS)}, s32 offen
    """)
    if PROF[0]:
        a("s_waitcnt vmcnt(0)")
        stamp(a, 7)
        prof_out(a, 0, SWS, 31)
    a(f"""
    s_cmp_lg_u32 s31, 0
    s_cbranch_scc1 K1_END
    s_mov_b32 exec_lo, -1
    s_mov_b32 exec_hi, 0
    v_mov_b32 v6, 0
    v_lshlrev_b32 v5, 2, v0
    s_lshl_b32 s32, s2, 7
    s_add_u32 s32, s32, {WS_SYNC:#x}
    buffer_store_dword v6, v5, {sr(SWS)}, s32 offen
    K1_END:
    s_endpgm
    """)


def desc(name, nv, ns=102, acc=None):
    return f""".p2align 6
.amdhsa_kernel {name}
  .amdhsa_next_free_vgpr {nv}
  .amdhsa_next_free_sgpr {ns}
  .amdhsa_accum_offset {acc or nv}
  .amdhsa_group_segment_fixed_size 0
  .amdhsa_kernarg_size 88
  .amdhsa_user_sgpr_count 2
  .amdhsa_user_sgpr_kernarg_segment_ptr 1
  .amdhsa_system_sgpr_workgroup_id_x 1
.end_amdhsa_kernel
"""


def build(path, kernels=("k1", "k2", "k3"), opts=None):
    opts = opts or {}
    import k23
    PROF[0] = int(opts.get("prof", 0))
    k23.PROF[0] = PROF[0]
    head = "; gated_mix (attention block + bilinear GLU), generated by a script\n"
    descs = ""
    body = ""
    for k in kernels:
        a = Asm()
        if k == "k1":
            gen_k1(a)
            head += f"; @launch kernel=k1_kernel grid=(256,1,1) block=(256,1,1) lds={K1_LDS}\n"
            descs += desc("k1_kernel", 128)
        elif k == "k2":
            k23.gen_k2(a, opts)
            head += f"; @launch kernel=k2_kernel grid=(256,1,1) block=(768,1,1) lds={k23.K2_LDS}\n"
            descs += desc("k2_kernel", 168)
        elif k == "kf":
            import importlib
            kf = importlib.import_module(opts.get("kfmod", "kf"))
            kf.PROF[0] = PROF[0]
            opts["fused"] = 1
            kf.gen_kf(a, opts)
            head += f"; @launch kernel=kf_kernel grid=(256,1,1) block=(768,1,1) lds={kf.KF_LDS}\n"
            descs += desc("kf_kernel", 168)
        elif k == "k3":
            k23.gen_k3(a, opts)
            head += f"; @launch kernel=k3_kernel grid=(256,1,1) block=(256,1,1) lds={k23.K3_LDS}\n"
            descs += desc("k3_kernel", 256)
        errs = a.check_edges()
        for e in errs:
            print("HAZARD", k, e)
        body += a.text()
    txt = head + '.amdgcn_target "amdgcn-amd-amdhsa--gfx950"\n.text\n' + body + '.section .rodata,"a"\n' + descs
    open(path, "w").write(txt)


if __name__ == "__main__":
    ks = sys.argv[2].split(",") if len(sys.argv) > 2 else ("k1", "k2", "k3")
    opts = dict(x.split("=") for x in sys.argv[3:])
    build(sys.argv[1], ks, opts)
```

```python
import re

TRANS = ("v_exp_", "v_log_", "v_rcp_", "v_rsq_", "v_sqrt_", "v_sin_", "v_cos_")


def _split_ops(s):
    out, depth, cur = [], 0, ""
    for ch in s:
        if ch == "[":
            depth += 1
        elif ch == "]":
            depth -= 1
        if ch == "," and depth == 0:
            out.append(cur.strip())
            cur = ""
        else:
            cur += ch
    if cur.strip():
        out.append(cur.strip())
    return out


def _regs(op):
    op = op.strip()
    op = op.lstrip("-").strip("|")
    if op.startswith("abs(") or op.startswith("neg("):
        op = op[4:-1]
    m = re.fullmatch(r"([vsa])(\d+)", op)
    if m:
        return {(m.group(1), int(m.group(2)))}
    m = re.fullmatch(r"([vsa])\[(\d+):(\d+)\]", op)
    if m:
        return {(m.group(1), i) for i in range(int(m.group(2)), int(m.group(3)) + 1)}
    if op == "vcc":
        return {("s", 106), ("s", 107)}
    if op == "vcc_lo":
        return {("s", 106)}
    if op == "vcc_hi":
        return {("s", 107)}
    if op == "exec":
        return {("s", 126), ("s", 127)}
    if op == "exec_lo":
        return {("s", 126)}
    if op == "exec_hi":
        return {("s", 127)}
    if op == "m0":
        return {("s", 124)}
    return set()


class Ins:
    __slots__ = ("text", "mn", "dst", "src", "kind", "states", "srcc", "srcab", "sdata", "dpp", "passes", "wide")

    def __init__(self, text):
        self.text = text
        body = text.split(";")[0].strip()
        parts = body.split(None, 1)
        self.mn = mn = parts[0]
        rest = parts[1] if len(parts) > 1 else ""
        ops = _split_ops(rest)
        mods = ""
        if ops:
            last = ops[-1].split()
            ops[-1] = last[0] if last else ""
            mods = " ".join(last[1:])
        self.dst, self.src = set(), set()
        self.srcc, self.srcab, self.sdata = set(), set(), set()
        self.dpp = ("row_" in mods or "quad_perm" in mods or "wave_" in mods or "_dpp" in mn)
        self.states = 1
        self.passes = 0
        self.wide = False
        R = [_regs(o) for o in ops]
        if mn == "s_nop":
            self.kind = "nop"
            self.states = int(ops[0], 0) + 1
        elif mn.startswith("v_mfma"):
            self.kind = "mfma"
            self.passes = 8 if "32x32" in mn else 4
            self.dst = R[0]
            self.srcab = R[1] | R[2]
            self.srcc = R[3]
            self.src = self.srcab | self.srcc
        elif mn.startswith("v_"):
            self.kind = "trans" if mn.startswith(TRANS) else "valu"
            if "permlane" in mn and "swap" in mn:
                self.dst = R[0] | R[1]
                self.src = R[0] | R[1]
            elif mn.startswith("v_cmpx"):
                self.dst = _regs("exec")
                for r in R:
                    self.src |= r
            elif re.match(r"v_(add|sub|subrev|addc|subb|subbrev)_co_", mn) or mn.startswith("v_div_scale") or mn.startswith("v_mad_u64") or mn.startswith("v_mad_i64"):
                self.dst = R[0] | R[1]
                for r in R[2:]:
                    self.src |= r
            else:
                self.dst = R[0]
                for r in R[1:]:
                    self.src |= r
                if mn.startswith(("v_fmac", "v_mac", "v_pk_fmac", "v_dot2c", "v_writelane")) or self.dpp or "sdwa" in mn:
                    self.src |= R[0]
                if mn.startswith("v_cndmask") and len(ops) == 3:
                    self.src |= _regs("vcc")
        elif mn.startswith("ds_"):
            self.kind = "ds"
            if mn.startswith(("ds_read", "ds_bpermute", "ds_permute", "ds_swizzle")) or "_rtn" in mn:
                self.dst = R[0]
                for r in R[1:]:
                    self.src |= r
            else:
                for r in R:
                    self.src |= r
        elif mn.startswith(("buffer_", "global_")):
            self.kind = "vmem"
            lds = (" lds" in (" " + mods)) or "_lds_" in mn
            if lds:
                self.kind = "dma"
                for r in R:
                    self.src |= r
                self.src |= _regs("m0")
            elif "_load" in mn:
                self.dst = R[0]
                for r in R[1:]:
                    self.src |= r
                if "d16" in mn:
                    self.src |= R[0]
            elif "atomic" in mn and "sc0" in mods.split():
                self.dst = R[0]
                for r in R:
                    self.src |= r
            else:
                for r in R:
                    self.src |= r
                if "store" in mn:
                    self.sdata = R[0] if mn.startswith("buffer_") else R[1]
                    self.wide = mn.endswith(("x3", "x4"))
        elif mn.startswith("s_"):
            self.kind = "salu"
            if mn.startswith(("s_cmp", "s_waitcnt", "s_branch", "s_cbranch", "s_barrier", "s_setprio", "s_sleep", "s_endpgm", "s_bitcmp")):
                for r in R:
                    self.src |= r
            elif mn.startswith(("s_load", "s_buffer_load", "s_memtime", "s_memrealtime")):
                self.kind = "smem"
                self.dst = R[0]
                for r in R[1:]:
                    self.src |= r
            else:
                self.dst = R[0]
                for r in R[1:]:
                    self.src |= r
                if "saveexec" in mn:
                    self.dst |= _regs("exec")
        else:
            raise ValueError("unknown instruction " + text)


def need(p, c):
    n = 0
    pv = p.kind in ("valu", "trans")
    cv = c.kind in ("valu", "trans")
    vd = {r for r in p.dst if r[0] in "va"}
    sd = {r for r in p.dst if r[0] == "s"}
    if pv:
        if c.kind == "mfma" and vd & c.src:
            n = max(n, 2)
        if c.kind == "mfma" and sd & _regs("exec"):
            n = max(n, 4)
        if p.kind == "trans" and cv and c.kind != "trans" and vd & (c.src | c.dst):
            n = max(n, 1)
        if p.kind == "trans" and c.kind == "trans" and vd & c.src:
            n = max(n, 1)
        if cv and c.mn.startswith(("v_readfirstlane", "v_readlane")) and vd & c.src:
            n = max(n, 1)
        if cv and "permlane" in c.mn and vd & c.src:
            n = max(n, 2)
        if cv and c.dpp and vd & c.src:
            n = max(n, 2)
        if cv and c.dpp and sd & _regs("exec"):
            n = max(n, 5)
        if c.kind in ("vmem", "dma") and sd & c.src:
            n = max(n, 5)
        if cv and sd & c.src:
            n = max(n, 4 if c.mn.startswith(("v_readlane", "v_writelane")) else 2)
        if cv and sd & _regs("exec") and c.mn.startswith(("v_readlane", "v_writelane", "v_readfirstlane")):
            n = max(n, 4)
        if cv and sd & _regs("exec") and "permlane" in c.mn:
            n = max(n, 4)
        if ("sdwa" in p.mn or "op_sel" in p.text) and cv and vd & (c.src | c.dst):
            n = max(n, 1)
    if p.kind == "mfma":
        big = {8: 12, 4: 8}[p.passes]
        if c.kind == "mfma":
            if p.dst & c.srcab:
                n = max(n, big)
            if p.dst & c.srcc and not (p.dst == c.srcc and p.passes == c.passes):
                n = max(n, big - 2)
            if p.dst & c.dst and not (p.dst == c.srcc and p.passes == c.passes):
                n = max(n, big - 2)
        elif c.kind in ("valu", "trans", "ds", "vmem", "dma"):
            if p.dst & (c.src | c.dst):
                n = max(n, big)
            if cv and p.srcc & c.dst:
                n = max(n, {8: 7, 4: 3}[p.passes])
    if p.kind == "salu" and c.kind == "dma" and sd & _regs("m0"):
        n = max(n, 1)
    if p.kind == "vmem" and p.wide and p.sdata & c.dst:
        n = max(n, 2 if cv else 1)
    return n


class Asm:
    def __init__(self):
        self.items = []
        self.auto = True

    def raw(self, s):
        self.items.append(s)

    def label(self, name):
        self.items.append(name + ":")

    def __call__(self, text):
        for line in text.strip().split("\n"):
            line = line.strip()
            if not line:
                continue
            if line.startswith(";"):
                self.items.append("    " + line)
                continue
            if line.endswith(":"):
                self.items.append(line)
                continue
            ins = Ins(line)
            if self.auto:
                pad = self._pad(self.items, ins)
                while pad > 0:
                    k = min(pad, 16)
                    self.items.append(Ins(f"s_nop {k-1}"))
                    pad -= k
            self.items.append(ins)

    @staticmethod
    def _pad(items, ins):
        dist, pad = 0, 0
        for it in reversed(items):
            if isinstance(it, str):
                continue
            if dist >= 20:
                break
            n = need(it, ins)
            if n > dist:
                pad = max(pad, n - dist)
            dist += it.states
        return pad

    def check_edges(self):
        labels = {it[:-1]: i for i, it in enumerate(self.items) if isinstance(it, str) and it.endswith(":")}
        errs = []
        for i, it in enumerate(self.items):
            if isinstance(it, Ins) and it.mn.startswith(("s_branch", "s_cbranch")):
                tgt = it.text.split(";")[0].split()[1]
                if tgt not in labels:
                    continue
                pre = [x for x in self.items[max(0, i - 40): i + 1]]
                seq = list(pre)
                cnt = 0
                for x in self.items[labels[tgt]:]:
                    if isinstance(x, str):
                        continue
                    p = self._pad(seq, x)
                    if p > 0:
                        errs.append(f"edge hazard: branch '{it.text}' -> '{x.text}' needs {p} more")
                    seq.append(x)
                    cnt += x.states
                    if cnt > 20 or x.mn in ("s_branch", "s_endpgm"):
                        break
        return errs

    def align8(self, head, mode=1):
        import subprocess
        def sizes():
            open("_sz.s", "w").write(head + self.text())
            r = subprocess.run(["clang", "-x", "assembler", "-target", "amdgcn-amd-amdhsa", "-mcpu=gfx950", "-c", "_sz.s", "-o", "_sz.o"], capture_output=True, text=True)
            assert r.returncode == 0, r.stderr
            d = subprocess.run(["llvm-objdump", "-d", "_sz.o"], capture_output=True, text=True).stdout
            return [4 * len(m.group(2).split()) for m in re.finditer(r"// ([0-9A-F]{12}): (.*)$", d, re.M)]
        sz = sizes()
        ins = [it for it in self.items if isinstance(it, Ins)]
        assert len(sz) == len(ins), (len(sz), len(ins))
        size = {id(i): s for i, s in zip(ins, sz)}
        out, off, on, cand = [], 0, False, None
        want = 0 if mode == 1 else 4
        for it in self.items:
            if isinstance(it, str):
                if it.startswith(";ALIGN_BEGIN"):
                    on, cand = True, None
                    while off % 64:
                        out.append(Ins("s_nop 0")); off += 4
                elif it.startswith(";ALIGN_END"):
                    on = False
                elif ".p2align 8" in it:
                    off = 0
                out.append(it)
                continue
            s = size[id(it)]
            if on and s == 8 and off % 8 != want:
                if cand is not None:
                    c = out[cand]
                    out[cand] = Ins(c.text.replace(c.mn, c.mn + "_e64", 1))
                else:
                    out.append(Ins("s_nop 0"))
                off += 4
            if s == 8:
                cand = None
            elif it.kind in ("valu", "trans") and not it.mn.endswith(("_e64", "_e32")) and not it.mn.startswith(("v_readfirstlane", "v_cmp", "v_cndmask")) and "_co_" not in it.mn and off % 8 == want:
                cand = len(out)
            out.append(it)
            off += s
        self.items = out

    def text(self):
        out = []
        for it in self.items:
            out.append(it if isinstance(it, str) else "    " + it.text)
        return "\n".join(out) + "\n"
```

```python
from gen import *

KV_B = 0
X_B = 49152
W_B = 81920
W_SLOT = 14592
W_UP = 7296
PA_B = W_B + 5 * W_SLOT
PG_B = PA_B + 2048
K2_LDS = PG_B + 1024
DN_REG = 16384
K3_LDS = 4 * 16384


def gemm_tile_addr(a, vlane, vA0, vA1, vtmp, vtmp2, sbase):
    a(f"""
    v_bfe_u32 v{vtmp}, v{vlane}, 2, 2
    v_lshrrev_b32 v{vtmp2}, 5, v{vlane}
    v_lshl_add_u32 v{vA0}, v{vtmp2}, 2, v{vtmp}
    v_lshlrev_b32 v{vA0}, 7, v{vA0}
    v_lshrrev_b32 v{vtmp}, 1, v{vtmp}
    v_lshl_add_u32 v{vA0}, v{vtmp}, 6, v{vA0}
    v_bfe_u32 v{vtmp}, v{vlane}, 4, 1
    v_lshl_add_u32 v{vA0}, v{vtmp}, 5, v{vA0}
    v_and_b32 v{vtmp}, 3, v{vlane}
    v_lshl_add_u32 v{vA0}, v{vtmp}, 3, v{vA0}
    v_add_u32 v{vA0}, s{sbase}, v{vA0}
    v_xor_b32 v{vA1}, 64, v{vA0}
    """)


def gemm_dma_off(a, vlane, vO, vtmp, vtmp2, sct128):
    a(f"""
    v_lshrrev_b32 v{vtmp}, 3, v{vlane}
    v_bfe_u32 v{vtmp2}, v{vlane}, 4, 1
    v_lshlrev_b32 v{vtmp2}, 2, v{vtmp2}
    v_and_b32 v{vO}, 7, v{vlane}
    v_xor_b32 v{vO}, v{vO}, v{vtmp2}
    v_lshlrev_b32 v{vO}, 4, v{vO}
    v_lshl_add_u32 v{vO}, v{vtmp}, 10, v{vO}
    v_add_u32 v{vO}, s{sct128}, v{vO}
    """)


def gen_k2(a, opts):
    spin = int(opts.get("spin", 400))
    prio = int(opts.get("prio", 2))
    gprio = int(opts.get("gprio", 0))
    gap = opts.get("gap", "0")
    def GAP():
        if gap.startswith("s"):
            a(f"s_sleep {gap[1:]}")
        else:
            n = int(gap)
            while n > 0:
                k = min(n, 16)
                a(f"s_nop {k-1}")
                n -= k
    safe = int(opts.get("safe", 0))
    SAFE = "s_add_u32 s60, s60, 1\n s_cmp_gt_u32 s60, 0x40000\n s_cbranch_scc1 K2_END\n" if safe else ""
    a.raw(".globl k2_kernel\n.p2align 8\n.type k2_kernel,@function\nk2_kernel:")
    SWS, SX, SWT, SWD = 16, 20, 24, 28
    a(f"""
    s_cmp_ge_u32 s2, 0x100
    s_cbranch_scc1 K2_END
    """)
    stamp(a, 0)
    a(f"""
    s_load_dwordx2 s[4:5], s[0:1], 0
    s_load_dwordx4 s[8:11], s[0:1], 32
    s_load_dwordx2 s[12:13], s[0:1], 48
    s_load_dwordx2 s[14:15], s[0:1], 80
    v_lshrrev_b32 v1, 6, v0
    v_and_b32 v2, 63, v0
    v_readfirstlane_b32 s3, v1
    s_mov_b32 s60, 0
    s_and_b32 s32, s2, 7
    s_lshr_b32 s33, s2, 3
    s_and_b32 s34, s33, 3
    s_lshr_b32 s35, s33, 2
    v_lshlrev_b32 v1, 4, v2
    s_cmp_ge_u32 s3, 8
    s_cselect_b32 s36, 0, 1
    v_mov_b32 v3, s36
    v_lshlrev_b32 v4, 2, v0
    v_add_u32 v4, {PA_B}, v4
    ds_write_b32 v4, v3
    s_cbranch_scc1 K2_GEMM
    """)
    Q, KF_, VF_, S_, P_, O_ = 8, [12, 16], [20, 28], [36, 52], 68, 76
    vKa, vKn, vPr, vPw, vPv, vT = 3, 4, 5, 6, 7, 92
    a(f"""
    s_lshl_b32 s36, s32, 2
    s_add_u32 s36, s36, s34
    s_lshl_b32 s37, s35, 3
    s_add_u32 s37, s37, s3
    s_lshl_b32 s38, s36, 16
    s_lshl_b32 s39, s37, 10
    s_add_u32 s39, s39, s38
    s_lshl_b32 s40, s3, 10
    s_add_u32 s41, s40, {WS_KF:#x}
    s_add_u32 s42, s40, {WS_VF - 4096:#x}
    s_cmp_lt_u32 s3, 4
    s_cselect_b32 s41, s41, s42
    s_add_u32 s41, s41, s38
    s_waitcnt lgkmcnt(0)
    """)
    mk_srd(a, SWS, 14, WS_SIZE)
    a(f"buffer_load_dwordx4 {vr(Q)}, v1, {sr(SWS)}, s39 offen")
    for s in range(4):
        a(f"""
        s_add_u32 m0, s40, {KV_B + s*8192}
        buffer_load_dwordx4 v1, {sr(SWS)}, s41 offen lds
        s_add_u32 s41, s41, 4096
        """)
    a(f"""
    s_setprio {prio}
    v_and_b32 v{vPr}, 7, v2
    v_mul_u32_u24 v{vPr}, 0x104, v{vPr}
    v_add_u32 v{vPr}, {PA_B}, v{vPr}
    v_lshlrev_b32 v{vPw}, 2, v0
    v_add_u32 v{vPw}, {PA_B}, v{vPw}
    v_mov_b32 v{vKa}, v1
    v_add_u32 v{vKn}, 0x2000, v1
    s_mov_b32 s44, 0x0000ffff
    s_mov_b32 s45, 0x0000ffff
    s_mov_b32 s46, 0
    s_mov_b32 s47, 0x2000
    s_mov_b32 s48, 0x8000
    v_mov_b32 v{vPv}, 0
    """)
    for r in range(16):
        a(f"v_mov_b32 v{VF_[0]+r}, 0x3f803f80")
    for r in range(16):
        a(f"v_mov_b32 v{O_+r}, 0")
    a(f"""
    s_waitcnt vmcnt(1) lgkmcnt(0)
    s_barrier
    """)
    stamp(a, 1)
    if PROF[0]:
        a("s_memtime s[76:77]")
    if opts.get("noatt"):
        a("s_endpgm")
    a(f"""
    ds_read_b128 {vr(KF_[0])}, v{vKa}
    ds_read_b128 {vr(KF_[1])}, v{vKa} offset:1024
    s_mov_b64 exec, s[44:45]
    ds_read_b128 {vr(VF_[0])}, v{vKa} offset:4096
    ds_read_b128 {vr(VF_[0]+4)}, v{vKa} offset:4352
    s_mov_b64 exec, -1
    s_waitcnt lgkmcnt(3)
    {MFMA} {vr(S_[0],16)}, {vr(KF_[0])}, {vr(Q)}, 0
    K2_ALOOP:
    """)

    def tile(t):
        cur, nxt = t & 1, (t + 1) & 1
        a("s_waitcnt lgkmcnt(0)")
        if t == 0:
            a(f"""
            v_cmp_gt_u32 vcc, s46, v{vPv}
            s_cbranch_vccnz K2_ASLOW
            K2_AOK:
            """)
        a(f"{MFMA} {vr(S_[nxt],16)}, {vr(KF_[nxt])}, {vr(Q)}, 0")
        kt, vt = t + 2, t + 1
        ka = vKa if kt < 4 else vKn
        va = vKa if vt < 4 else vKn
        a(f"""
        ds_read_b128 {vr(KF_[cur])}, v{ka} offset:{(kt & 3)*1024}
        s_mov_b64 exec, s[44:45]
        ds_read_b128 {vr(VF_[nxt])}, v{va} offset:{4096 + (vt & 3)*1024}
        ds_read_b128 {vr(VF_[nxt]+4)}, v{va} offset:{4096 + (vt & 3)*1024 + 256}
        s_mov_b64 exec, -1
        """)
        if t == 0:
            a(f"""
            s_add_u32 m0, s40, s48
            s_add_u32 s48, s48, 0x2000
            buffer_load_dwordx4 v1, {sr(SWS)}, s41 offen lds
            s_add_u32 s41, s41, 4096
            s_cmp_eq_u32 s48, 0xc000
            s_cselect_b32 s48, 0, s48
            """)
        if t == 3:
            a(f"ds_read_b32 v{vPv}, v{vPr}")
        S = S_[cur]
        for half in range(2):
            for r in range(8):
                a(f"v_exp_f32 v{S+8*half+r}, v{S+8*half+r}")
            for r in range(4):
                a(f"v_cvt_pk_bf16_f32 v{P_+4*half+r}, v{S+8*half+2*r}, v{S+8*half+2*r+1}")
            a(f"{MFMA} {vr(O_,16)}, {vr(VF_[cur]+4*half)}, {vr(P_+4*half)}, {vr(O_,16)}")

    for t in range(4):
        tile(t)
    a(f"""
    s_waitcnt vmcnt(1)
    v_mov_b32 v{vT}, s46
    v_add_u32 v{vT}, 2, v{vT}
    ds_write_b32 v{vPw}, v{vT}
    v_mov_b32 v{vKa}, v{vKn}
    s_add_u32 s47, s47, 0x2000
    s_cmp_eq_u32 s47, 0xc000
    s_cselect_b32 s47, 0, s47
    v_add_u32 v{vKn}, s47, v1
    s_add_u32 s46, s46, 1
    s_cmp_lt_u32 s46, 16
    s_cbranch_scc1 K2_ALOOP
    """)
    stamp(a, 2)
    if PROF[0]:
        a("s_memtime s[78:79]")
    a(f"""
    s_setprio 0
    s_lshl_b32 s39, s37, 15
    s_lshl_b32 s42, s36, 10
    s_add_u32 s39, s39, s42
    s_add_u32 s39, s39, {WS_OF:#x}
    s_mov_b32 s42, 0x21800000
    s_mov_b32 s43, 0x5d800000
    v_mov_b32 v{vT}, 0x207
    v_cmp_nge_f32 vcc, v{O_+8}, s42
    s_mov_b64 s[50:51], vcc
    v_cmp_nle_f32 vcc, v{O_+8}, s43
    s_or_b64 s[50:51], s[50:51], vcc
    """)
    for r in range(8):
        a(f"""
        v_cmp_class_f32 vcc, v{O_+r}, v{vT}
        s_or_b64 s[50:51], s[50:51], vcc
        """)
    if opts.get("forcefb"):
        a("s_mov_b64 s[50:51], -1")
    a(f"""
    s_cmp_lg_u64 s[50:51], 0
    s_cbranch_scc1 K2_AFB
    K2_AFIN:
    v_rcp_f32 v{vT}, v{O_+8}
    """)
    for r in range(8):
        a(f"v_mul_f32 v{O_+r}, v{O_+r}, v{vT}")
    for r in range(4):
        a(f"v_cvt_pk_bf16_f32 v{P_+r}, v{O_+2*r}, v{O_+2*r+1}")
    a(f"""
    buffer_store_dwordx4 {vr(P_)}, v1, {sr(SWS)}, s39 offen
    """)
    if PROF[0]:
        a("s_waitcnt vmcnt(0)")
        for i in range(3, 6):
            stamp(a, i)
        prof_out(a, 1, SWS, 3)
    a(f"""
    s_endpgm
    K2_ASLOW:
    {SAFE}
    s_sleep 1
    ds_read_b32 v{vPv}, v{vPr}
    s_waitcnt lgkmcnt(0)
    v_cmp_gt_u32 vcc, s46, v{vPv}
    s_cbranch_vccnz K2_ASLOW
    s_branch K2_AOK
    """)
    C_ = 96
    a(f"""
    K2_AFB:
    s_waitcnt vmcnt(0) lgkmcnt(0)
    s_add_u32 s41, s38, {WS_KF:#x}
    s_mov_b32 s46, 0
    v_mov_b32 v{vT}, 0xff800000
    K2_AFB1:
    buffer_load_dwordx4 {vr(KF_[0])}, v1, {sr(SWS)}, s41 offen
    s_add_u32 s41, s41, 1024
    s_waitcnt vmcnt(0)
    {MFMA} {vr(S_[0],16)}, {vr(KF_[0])}, {vr(Q)}, 0
    """)
    for r in range(8):
        a(f"v_max3_f32 v{vT}, v{S_[0]+2*r}, v{S_[0]+2*r+1}, v{vT}")
    a(f"""
    s_add_u32 s46, s46, 1
    s_cmp_lt_u32 s46, 64
    s_cbranch_scc1 K2_AFB1
    v_mov_b32 v{vT+1}, v{vT}
    v_permlane32_swap_b32 v{vT}, v{vT+1}
    v_max_f32 v{vT}, v{vT}, v{vT+1}
    """)
    for r in range(16):
        a(f"v_mul_f32 v{C_+r}, -1.0, v{vT}")
    for r in range(16):
        a(f"v_mov_b32 v{O_+r}, 0")
    a(f"""
    s_add_u32 s41, s38, {WS_KF:#x}
    s_add_u32 s42, s38, {WS_VF:#x}
    s_mov_b32 s46, 0
    K2_AFB2:
    buffer_load_dwordx4 {vr(KF_[0])}, v1, {sr(SWS)}, s41 offen
    s_mov_b64 exec, s[44:45]
    buffer_load_dwordx4 {vr(VF_[0])}, v1, {sr(SWS)}, s42 offen
    buffer_load_dwordx4 {vr(VF_[0]+4)}, v1, {sr(SWS)}, s42 offen offset:256
    s_mov_b64 exec, -1
    s_add_u32 s41, s41, 1024
    s_add_u32 s42, s42, 1024
    s_waitcnt vmcnt(0)
    {MFMA} {vr(S_[0],16)}, {vr(KF_[0])}, {vr(Q)}, {vr(C_,16)}
    """)
    for r in range(16):
        a(f"v_exp_f32 v{S_[0]+r}, v{S_[0]+r}")
    for r in range(8):
        a(f"v_cvt_pk_bf16_f32 v{P_+r}, v{S_[0]+2*r}, v{S_[0]+2*r+1}")
    a(f"""
    {MFMA} {vr(O_,16)}, {vr(VF_[0])}, {vr(P_)}, {vr(O_,16)}
    {MFMA} {vr(O_,16)}, {vr(VF_[0]+4)}, {vr(P_+4)}, {vr(O_,16)}
    s_add_u32 s46, s46, 1
    s_cmp_lt_u32 s46, 64
    s_nop 7
    s_nop 7
    s_cbranch_scc1 K2_AFB2
    s_branch K2_AFIN
    """)

    vXo, vWo, vXb, vXa, vXa2, vWb, vWc, vWn, vPr, vPw, vPv, vT, vT2 = 3, 4, 8, 9, 10, 11, 12, 13, 14, 15, 16, 17, 18
    XF, WF, ACC = [20, 24], 28, 56
    a(f"""
    K2_GEMM:
    s_setprio {gprio}
    s_sub_u32 s3, s3, 8
    s_lshr_b32 s36, s32, 1
    s_lshl_b32 s36, s36, 2
    s_add_u32 s36, s36, s34
    s_and_b32 s37, s32, 1
    s_lshl_b32 s37, s37, 3
    s_add_u32 s37, s37, s35
    """)
    a(f"""
    v_lshrrev_b32 v{vT}, 2, v2
    v_and_b32 v{vXo}, 3, v2
    v_lshrrev_b32 v{vT2}, 4, v2
    v_xor_b32 v{vXo}, v{vXo}, v{vT2}
    v_lshlrev_b32 v{vXo}, 4, v{vXo}
    v_lshl_add_u32 v{vXo}, v{vT}, 10, v{vXo}
    s_lshl_b32 s38, s36, 17
    s_lshl_b32 s39, s3, 15
    s_add_u32 s38, s38, s39
    s_add_u32 s39, s38, 0x4000
    s_and_b32 s40, s3, 1
    s_mul_i32 s41, s40, {16*3584}
    s_mul_i32 s42, s37, 224
    s_add_u32 s41, s41, s42
    """)
    for i in range(4):
        a(f"""
        v_add_u32 v{vT}, {64*i}, v2
        v_mul_u32_u24 v{vT2}, 0x4925, v{vT}
        v_lshrrev_b32 v{vT2}, 18, v{vT2}
        v_mul_u32_u24 v{vWo+i}, 14, v{vT2}
        v_sub_u32 v{vT}, v{vT}, v{vWo+i}
        v_mul_u32_u24 v{vT2}, 0xe00, v{vT2}
        v_lshl_add_u32 v{vT2}, v{vT}, 4, v{vT2}
        v_add_u32 v{vWo+i}, s41, v{vT2}
        """)
    a(f"""
    s_lshr_b32 s42, s3, 1
    s_mul_i32 s42, s42, {W_UP}
    s_mul_i32 s43, s40, 3584
    s_add_u32 s42, s42, s43
    s_add_u32 s42, s42, {W_B}
    s_lshl_b32 s43, s3, 13
    s_add_u32 s43, s43, {X_B}
    s_mov_b32 s44, 0
    s_mov_b32 s45, 0
    s_mov_b32 s46, 0
    s_waitcnt lgkmcnt(0)
    s_cmp_lt_u32 s3, 2
    s_cselect_b32 s8, s8, s10
    s_cselect_b32 s9, s9, s11
    """)
    mk_srd(a, SWS, 14, WS_SIZE)
    mk_srd(a, SX, 4, 0x200000)
    mk_srd(a, SWT, 8, 512 * 3584)
    mk_srd(a, SWD, 12, 1792 * 1024)

    def dma_w():
        a("s_add_u32 s47, s42, s45")
        for i in range(4):
            if i == 3:
                a("s_mov_b32 exec_hi, 0")
            a(f"""
            s_add_u32 m0, s47, {i*1024}
            buffer_load_dwordx4 v{vWo+i}, {sr(SWT)}, s44 offen lds
            """)
        a(f"""
        s_mov_b32 exec_hi, -1
        s_add_u32 s44, s44, {32*3584}
        s_add_u32 s45, s45, {W_SLOT}
        s_cmp_eq_u32 s45, {5*W_SLOT}
        s_cselect_b32 s45, 0, s45
        """)

    def dma_x():
        a(f"""
        s_add_u32 m0, s43, s46
        s_add_u32 s47, s43, s46
        buffer_load_dwordx4 v{vXo}, {sr(SX)}, s38 offen lds
        s_add_u32 m0, s47, 1024
        s_add_u32 s38, s38, 64
        buffer_load_dwordx4 v{vXo}, {sr(SX)}, s39 offen lds
        s_add_u32 s39, s39, 64
        s_add_u32 s46, s46, 2048
        s_and_b32 s46, s46, 0x1fff
        """)

    dma_w()
    for m in range(3):
        dma_w()
        dma_x()
    a(f"""
    v_and_b32 v{vT}, 31, v2
    v_lshrrev_b32 v{vT2}, 5, v2
    v_bfe_u32 v{vXb}, v2, 2, 2
    v_xor_b32 v{vXb}, v{vXb}, v{vT2}
    v_lshlrev_b32 v{vXb}, 4, v{vXb}
    v_lshl_add_u32 v{vXb}, v{vT}, 6, v{vXb}
    v_add_u32 v{vXb}, s43, v{vXb}
    v_bfe_u32 v{vT}, v2, 2, 2
    v_lshl_add_u32 v{vT}, v{vT2}, 3, v{vT}
    v_mul_u32_u24 v{vWb}, 0xe0, v{vT}
    v_bfe_u32 v{vT}, v2, 4, 1
    v_mul_u32_u24 v{vT}, {W_UP}, v{vT}
    v_add_u32 v{vWb}, v{vWb}, v{vT}
    v_and_b32 v{vT}, 3, v2
    v_lshl_add_u32 v{vWb}, v{vT}, 3, v{vWb}
    v_add_u32 v{vWb}, {W_B}, v{vWb}
    v_mov_b32 v{vWc}, v{vWb}
    v_mov_b32 v{vXa}, v{vXb}
    v_xor_b32 v{vXa2}, 32, v{vXb}
    v_and_b32 v{vPr}, 3, v2
    v_mul_u32_u24 v{vPr}, 0x104, v{vPr}
    v_add_u32 v{vPr}, {PG_B}, v{vPr}
    v_lshlrev_b32 v{vPw}, 2, v0
    v_add_u32 v{vPw}, {PA_B}, v{vPw}
    s_mov_b32 s48, 0
    s_mov_b32 s49, {W_SLOT}
    s_mov_b32 s50, 2048
    """)
    for r in range(112):
        a(f"v_mov_b32 v{ACC+r}, 0")

    def wread(j, va, ksp):
        for rd in range(2):
            a(f"ds_read_b64_tr_b16 {vr(WF+4*j+2*rd, 2)}, v{va} offset:{(16*ksp + 4*rd)*224 + j*32}")

    a(f"""
    s_waitcnt vmcnt(12) lgkmcnt(0)
    s_barrier
    """)
    if opts.get("nogemm"):
        a("s_endpgm")
    stamp(a, 1)
    a(f"""
    ds_read_b128 {vr(XF[0])}, v{vXa}
    """)
    for j in range(7):
        wread(j, vWc, 0)
    a(f"""
    K2_GLOOP:
    ds_read_b128 {vr(XF[1])}, v{vXa2}
    """)
    for j in range(7):
        a(f"""
        s_waitcnt lgkmcnt(13)
        {MFMA} {vr(ACC+16*j,16)}, {vr(WF+4*j)}, {vr(XF[0])}, {vr(ACC+16*j,16)}
        """)
        wread(j, vWc, 1)
        if j == 4:
            a(f"ds_read_b32 v{vPv}, v{vPr}")
        GAP()
    a(f"""
    s_waitcnt lgkmcnt(4)
    v_cmp_gt_u32 vcc, s48, v{vPv}
    s_cbranch_vccnz K2_GSLOW
    K2_GOK:
    s_cmp_lt_u32 s48, 12
    s_cbranch_scc0 K2_GTAIL
    s_waitcnt vmcnt(6)
    """)
    dma_w()
    a("K2_GT2:")
    dma_x()
    a(f"""
    v_add_u32 v{vWn}, s49, v{vWb}
    v_add_u32 v{vXa}, s50, v{vXb}
    s_add_u32 s49, s49, {W_SLOT}
    s_cmp_eq_u32 s49, {5*W_SLOT}
    s_cselect_b32 s49, 0, s49
    s_add_u32 s50, s50, 2048
    s_and_b32 s50, s50, 0x1fff
    ds_read_b128 {vr(XF[0])}, v{vXa}
    """)
    for j in range(7):
        a(f"""
        s_waitcnt lgkmcnt(13)
        {MFMA} {vr(ACC+16*j,16)}, {vr(WF+4*j)}, {vr(XF[1])}, {vr(ACC+16*j,16)}
        """)
        wread(j, vWn, 0)
        GAP()
    a(f"""
    s_add_u32 s48, s48, 1
    v_mov_b32 v{vT}, s48
    v_xor_b32 v{vXa2}, 32, v{vXa}
    v_mov_b32 v{vWc}, v{vWn}
    ds_write_b32 v{vPw}, v{vT}
    s_cmp_lt_u32 s48, 16
    s_cbranch_scc1 K2_GLOOP
    """)
    stamp(a, 2)
    a(f"""
    s_lshl_b32 s38, s36, 2
    s_add_u32 s38, s38, s3
    s_mul_i32 s39, s38, 112
    s_mul_i32 s40, s37, 7
    s_add_u32 s39, s39, s40
    s_lshl_b32 s39, s39, 10
    s_add_u32 s39, s39, {WS_HF:#x}
    s_add_u32 s40, s39, 4096
    s_waitcnt lgkmcnt(0)
    """)
    for j in range(7):
        A = ACC + 16 * j
        for r in range(4):
            a(f"v_pk_mul_f32 {vr(A+2*r,2)}, {vr(A+2*r,2)}, {vr(A+8+2*r,2)}")
        for r in range(4):
            a(f"v_cvt_pk_bf16_f32 v{WF+4*j+r}, v{A+2*r}, v{A+2*r+1}")
        so, off = (39, j * 1024) if j < 4 else (40, (j - 4) * 1024)
        a(f"buffer_store_dwordx4 {vr(WF+4*j)}, v1, {sr(SWS)}, s{so} offen offset:{off} sc1")
    if opts.get("nodown"):
        a("s_endpgm")
    vA0, vA1, vO = 8, 9, 10
    HB, WD2, AC2 = 20, 76, 92
    a(f"""
    s_lshr_b32 s40, s38, 1
    s_lshl_b32 s40, s40, 2
    s_lshr_b32 s41, s37, 2
    s_add_u32 s40, s40, s41
    s_lshl_b32 s40, s40, 7
    s_add_u32 s40, s40, {WS_SYNC:#x}
    s_lshl_b32 s36, s32, 2
    s_add_u32 s36, s36, s34
    s_lshl_b32 s41, s36, 2
    s_add_u32 s41, s41, s3
    s_lshl_b32 s41, s41, 7
    s_add_u32 s41, s41, {WS_SYNC:#x}
    s_lshl_b32 s42, s35, 7
    s_mul_i32 s43, s3, {DN_REG}
    s_add_u32 s43, s43, {W_B}
    s_mul_i32 s44, s3, {28*16*1024}
    s_add_u32 s45, s44, 8192
    s_mul_i32 s46, s36, {224*1024}
    s_mul_i32 s47, s3, {28*1024}
    s_add_u32 s46, s46, s47
    s_add_u32 s46, s46, {WS_HF:#x}
    s_add_u32 s47, s46, {112*1024}
    """)
    gemm_tile_addr(a, 2, vA0, vA1, vT, vT2, 43)
    gemm_dma_off(a, 2, vO, vT, vT2, 42)
    a(f"""
    v_mov_b32 v{vT}, 1
    v_mov_b32 v{vT2}, 0
    s_waitcnt vmcnt(0)
    """)
    stamp(a, 3)
    a(f"""
    s_mov_b64 exec, 1
    buffer_atomic_add v{vT}, v{vT2}, {sr(SWS)}, s40 offen
    s_mov_b64 exec, -1
    K2_DW1:
    {SAFE}
    s_sleep 1
    ds_read_b32 v{vPv}, v{vPr}
    s_waitcnt lgkmcnt(0)
    v_cmp_gt_u32 vcc, 16, v{vPv}
    s_cbranch_vccnz K2_DW1
    s_mov_b32 s48, s44
    s_mov_b32 s49, s45
    """)
    for i in range(7):
        a(f"""
        s_add_u32 m0, s43, {i*2048}
        buffer_load_dwordx4 v{vO}, {sr(SWD)}, s48 offen lds
        s_add_u32 m0, s43, {i*2048 + 1024}
        s_add_u32 s48, s48, 0x4000
        buffer_load_dwordx4 v{vO}, {sr(SWD)}, s49 offen lds
        s_add_u32 s49, s49, 0x4000
        """)
    for r in range(64):
        a(f"v_mov_b32 v{AC2+r}, 0")
    a(f"""
    s_mov_b32 s50, {spin}
    K2_DPOLL:
    s_cmp_eq_u32 s50, 0
    s_cbranch_scc1 K2_DABORT
    s_sub_u32 s50, s50, 1
    buffer_load_dword v{vT}, v{vT2}, {sr(SWS)}, s41 offen sc1
    s_waitcnt vmcnt(0)
    v_readfirstlane_b32 s51, v{vT}
    s_cmp_ge_u32 s51, 8
    s_cbranch_scc1 K2_DGO
    s_sleep 4
    s_branch K2_DPOLL
    K2_DGO:
    """)
    stamp(a, 4)

    def dn_issue(i):
        a(f"""
        buffer_load_dwordx4 {vr(HB+8*i)}, v1, {sr(SWS)}, s46 offen sc1
        buffer_load_dwordx4 {vr(HB+8*i+4)}, v1, {sr(SWS)}, s47 offen sc1
        s_add_u32 m0, s43, {i*2048}
        s_add_u32 s46, s46, 1024
        buffer_load_dwordx4 v{vO}, {sr(SWD)}, s44 offen lds
        s_add_u32 m0, s43, {i*2048 + 1024}
        s_add_u32 s47, s47, 1024
        buffer_load_dwordx4 v{vO}, {sr(SWD)}, s45 offen lds
        s_add_u32 s44, s44, 0x4000
        s_add_u32 s45, s45, 0x4000
        """)

    for i in range(7):
        dn_issue(i)
    a("""
    s_mov_b32 s50, 0
    K2_DLOOP:
    """)
    for i in range(7):
        w = WD2 + 8 * (i & 1)
        a(f"""
        s_waitcnt vmcnt(24)
        ds_read_b64_tr_b16 {vr(w,2)}, v{vA0} offset:{i*2048}
        ds_read_b64_tr_b16 {vr(w+2,2)}, v{vA0} offset:{i*2048+1024}
        ds_read_b64_tr_b16 {vr(w+4,2)}, v{vA1} offset:{i*2048}
        ds_read_b64_tr_b16 {vr(w+6,2)}, v{vA1} offset:{i*2048+1024}
        s_waitcnt lgkmcnt(2)
        {MFMA} {vr(AC2,16)}, {vr(w)}, {vr(HB+8*i)}, {vr(AC2,16)}
        """)
        GAP()
        a(f"{MFMA} {vr(AC2+16,16)}, {vr(w)}, {vr(HB+8*i+4)}, {vr(AC2+16,16)}")
        GAP()
        a(f"""
        s_waitcnt lgkmcnt(0)
        {MFMA} {vr(AC2+32,16)}, {vr(w+4)}, {vr(HB+8*i)}, {vr(AC2+32,16)}
        """)
        GAP()
        a(f"{MFMA} {vr(AC2+48,16)}, {vr(w+4)}, {vr(HB+8*i+4)}, {vr(AC2+48,16)}")
        dn_issue(i)
        GAP()
    a(f"""
    s_add_u32 s50, s50, 1
    s_cmp_lt_u32 s50, 4
    s_cbranch_scc1 K2_DLOOP
    """)
    stamp(a, 5)
    a(f"""
    s_waitcnt vmcnt(0)
    v_add_u32 v{vA0}, s43, v1
    v_add_u32 v{vA1}, {W_B}, v1
    s_lshl_b32 s44, s3, 12
    v_add_u32 v{vA1}, s44, v{vA1}
    """)
    for q in range(4):
        for i in range(4):
            a(f"ds_write_b128 v{vA0}, {vr(AC2+16*q+4*i)} offset:{q*4096 + i*1024}")
    a(f"""
    v_mov_b32 v{vT}, 17
    s_waitcnt lgkmcnt(0)
    ds_write_b32 v{vPw}, v{vT}
    K2_DW2:
    {SAFE}
    s_sleep 1
    ds_read_b32 v{vPv}, v{vPr}
    s_waitcnt lgkmcnt(0)
    v_cmp_gt_u32 vcc, 17, v{vPv}
    s_cbranch_vccnz K2_DW2
    v_cmp_lt_u32 vcc, 17, v{vPv}
    s_cbranch_vccnz K2_END
    """)
    for g in range(4):
        for i in range(4):
            a(f"ds_read_b128 {vr(AC2+16*g+4*i)}, v{vA1} offset:{g*DN_REG + i*1024}")
    a(f"""
    s_lshl_b32 s44, s36, 3
    s_add_u32 s44, s44, s35
    s_lshl_b32 s45, s44, 2
    s_add_u32 s45, s45, s3
    s_lshl_b32 s46, s45, 11
    s_add_u32 s46, s46, {WS_BB:#x}
    s_lshl_b32 s45, s45, 2
    s_add_u32 s45, s45, {WS_SYNC + 16384:#x}
    s_waitcnt lgkmcnt(8)
    """)
    for r in range(8):
        a(f"v_pk_add_f32 {vr(AC2+2*r,2)}, {vr(AC2+2*r,2)}, {vr(AC2+16+2*r,2)}")
    a("s_waitcnt lgkmcnt(0)")
    for r in range(8):
        a(f"v_pk_add_f32 {vr(AC2+32+2*r,2)}, {vr(AC2+32+2*r,2)}, {vr(AC2+48+2*r,2)}")
    for r in range(8):
        a(f"v_pk_add_f32 {vr(AC2+2*r,2)}, {vr(AC2+2*r,2)}, {vr(AC2+32+2*r,2)}")
    for r in range(8):
        a(f"v_cvt_pk_bf16_f32 v{HB+r}, v{AC2+2*r}, v{AC2+2*r+1}")
    a(f"""
    buffer_store_dwordx4 {vr(HB)}, v1, {sr(SWS)}, s46 offen
    buffer_store_dwordx4 {vr(HB+4)}, v1, {sr(SWS)}, s46 offen offset:1024
    v_mov_b32 v{vT}, 1
    s_mov_b64 exec, 1
    buffer_store_dword v{vT}, v{vT2}, {sr(SWS)}, s45 offen
    """)
    if PROF[0]:
        stamp(a, 6)
        a("s_waitcnt vmcnt(0)")
        stamp(a, 7)
        a("s_add_u32 s3, s3, 8")
        prof_out(a, 1, SWS, 3)
    a(f"""
    K2_END:
    s_endpgm
    K2_DABORT:
    v_mov_b32 v{vT}, 0x1000
    s_waitcnt vmcnt(0)
    ds_write_b32 v{vPw}, v{vT}
    s_waitcnt lgkmcnt(0)
    s_endpgm
    K2_GSLOW:
    {SAFE}
    s_sleep 1
    ds_read_b32 v{vPv}, v{vPr}
    s_waitcnt lgkmcnt(0)
    v_cmp_gt_u32 vcc, s48, v{vPv}
    s_cbranch_vccnz K2_GSLOW
    s_branch K2_GOK
    K2_GTAIL:
    s_waitcnt vmcnt(2)
    s_branch K2_GT2
    """)


def gen_k3(a, opts):
    a.raw(".globl k3_kernel\n.p2align 8\n.type k3_kernel,@function\nk3_kernel:")
    SWS, SWO, SOUT, SWD = 16, 20, 24, 28
    vA0, vA1, vO, vT, vT2, vG, vOa = 3, 4, 5, 6, 7, 8, 9
    BB_, W2, OB, AC, AB = 12, 20, 36, 100, 164
    a(f"""
    s_cmp_ge_u32 s2, 0x100
    s_cbranch_scc1 K3_END
    """)
    stamp(a, 0)
    a(f"""
    s_load_dwordx2 s[4:5], s[0:1], 16
    s_load_dwordx2 s[6:7], s[0:1], 48
    s_load_dwordx2 s[8:9], s[0:1], 64
    s_load_dwordx2 s[14:15], s[0:1], 80
    v_lshrrev_b32 v1, 6, v0
    v_and_b32 v2, 63, v0
    v_readfirstlane_b32 s3, v1
    s_and_b32 s32, s2, 7
    s_lshr_b32 s33, s2, 3
    s_and_b32 s34, s33, 3
    s_lshr_b32 s35, s33, 2
    s_lshl_b32 s36, s32, 2
    s_add_u32 s36, s36, s34
    v_lshlrev_b32 v1, 4, v2
    s_lshl_b32 s42, s35, 7
    s_lshl_b32 s43, s3, 14
    s_lshl_b32 s44, s3, 17
    s_add_u32 s45, s44, 8192
    s_lshl_b32 s46, s36, 16
    s_lshl_b32 s47, s3, 13
    s_add_u32 s46, s46, s47
    s_add_u32 s46, s46, {WS_OF:#x}
    s_add_u32 s47, s46, 0x8000
    s_lshl_b32 s37, s36, 3
    s_add_u32 s37, s37, s35
    s_lshl_b32 s38, s37, 4
    s_add_u32 s38, s38, {WS_SYNC + 16384:#x}
    s_lshl_b32 s39, s37, 2
    s_add_u32 s39, s39, s3
    s_lshl_b32 s39, s39, 11
    s_add_u32 s39, s39, {WS_BB:#x}
    """)
    gemm_dma_off(a, 2, vO, vT, vT2, 42)
    a("s_waitcnt lgkmcnt(0)")
    mk_srd(a, SWS, 14, WS_SIZE)
    mk_srd(a, SWO, 4, 512 * 1024)
    a("s_load_dwordx4 s[52:55], s[14:15], s38")
    fused = opts.get("fused")
    vF = 10
    if fused:
        a(f"""
        v_and_b32 v{vF}, 15, v2
        v_lshlrev_b32 v{vF}, 2, v{vF}
        s_lshl_b32 s56, s36, 8
        s_lshl_b32 s57, s3, 6
        s_add_u32 s56, s56, s57
        s_add_u32 s56, s56, {WS_SYNC + 20480:#x}
        s_mov_b32 s58, s46
        buffer_load_dword v{vF}, v{vF}, {sr(SWS)}, s56 offen
        """)
    for i in range(8):
        a(f"""
        s_add_u32 m0, s43, {i*2048}
        buffer_load_dwordx4 {vr(OB+8*i)}, v1, {sr(SWS)}, s46 offen offset:{(i&3)*1024}
        buffer_load_dwordx4 v{vO}, {sr(SWO)}, s44 offen lds
        s_add_u32 m0, s43, {i*2048 + 1024}
        buffer_load_dwordx4 {vr(OB+8*i+4)}, v1, {sr(SWS)}, s47 offen offset:{(i&3)*1024}
        buffer_load_dwordx4 v{vO}, {sr(SWO)}, s45 offen lds
        s_add_u32 s44, s44, 0x4000
        s_add_u32 s45, s45, 0x4000
        """)
        if i == 3:
            a("s_add_u32 s46, s46, 4096\n s_add_u32 s47, s47, 4096")
    a(f"""
    buffer_load_dwordx4 {vr(BB_)}, v1, {sr(SWS)}, s39 offen
    buffer_load_dwordx4 {vr(BB_+4)}, v1, {sr(SWS)}, s39 offen offset:1024
    s_and_b32 s40, s3, 1
    s_lshl_b32 s41, s36, 1
    s_add_u32 s41, s41, s40
    s_lshl_b32 s48, s41, 7
    s_add_u32 s48, s48, {WS_G:#x}
    v_and_b32 v{vT}, 31, v2
    v_lshlrev_b32 v{vT2}, 2, v{vT}
    buffer_load_dword v{vG}, v{vT2}, {sr(SWS)}, s48 offen
    v_lshrrev_b32 v{vOa}, 5, v2
    v_lshlrev_b32 v{vOa}, 4, v{vOa}
    v_lshl_add_u32 v{vOa}, v{vT}, 10, v{vOa}
    s_lshl_b32 s49, s41, 15
    s_add_u32 s49, s49, s42
    s_lshr_b32 s40, s3, 1
    s_lshl_b32 s40, s40, 6
    s_add_u32 s49, s49, s40
    """)
    mk_srd(a, SOUT, 8, 2048 * 1024)
    gemm_tile_addr(a, 2, vA0, vA1, vT, vT2, 43)
    for i in range(8):
        w = W2 + 8 * (i & 1)
        c = [("0" if i == 0 else vr(AC + 16 * q, 16)) for q in range(4)]
        a(f"s_waitcnt vmcnt({3 + 4*(7-i)})")
        if i in (0, 7):
            stamp(a, 1 if i == 0 else 2)
        if i == 0 and fused:
            a(f"""
            v_cmp_ne_u32 vcc, 1, v{vF}
            s_cbranch_vccnz K3_AFB
            K3_AOK:
            """)
        a(f"""
        ds_read_b64_tr_b16 {vr(w,2)}, v{vA0} offset:{i*2048}
        ds_read_b64_tr_b16 {vr(w+2,2)}, v{vA0} offset:{i*2048+1024}
        ds_read_b64_tr_b16 {vr(w+4,2)}, v{vA1} offset:{i*2048}
        ds_read_b64_tr_b16 {vr(w+6,2)}, v{vA1} offset:{i*2048+1024}
        s_waitcnt lgkmcnt(2)
        {MFMA} {vr(AC,16)}, {vr(w)}, {vr(OB+8*i)}, {c[0]}
        {MFMA} {vr(AC+16,16)}, {vr(w)}, {vr(OB+8*i+4)}, {c[1]}
        s_waitcnt lgkmcnt(0)
        {MFMA} {vr(AC+32,16)}, {vr(w+4)}, {vr(OB+8*i)}, {c[2]}
        {MFMA} {vr(AC+48,16)}, {vr(w+4)}, {vr(OB+8*i+4)}, {c[3]}
        """)
    a(f"""
    s_and_b32 s52, s52, s53
    s_and_b32 s54, s54, s55
    s_and_b32 s52, s52, s54
    s_cmp_eq_u32 s52, 1
    s_cbranch_scc0 K3_FB
    K3_RED:
    """)
    stamp(a, 3)
    a(f"""
    v_add_u32 v{vT}, s43, v1
    s_lshl_b32 s44, s3, 12
    v_add_u32 v{vT2}, s44, v1
    """)
    for q in range(4):
        for i in range(4):
            a(f"ds_write_b128 v{vT}, {vr(AC+16*q+4*i)} offset:{q*4096 + i*1024}")
    a("""
    s_waitcnt lgkmcnt(0)
    s_barrier
    """)
    for g in range(4):
        for i in range(4):
            a(f"ds_read_b128 {vr(AC+16*g+4*i)}, v{vT2} offset:{g*16384 + i*1024}")
    a(f"""
    s_waitcnt vmcnt(0)
    v_lshlrev_b32 v{vA0}, 16, v{vG}
    v_and_b32 v{vA1}, 0xffff0000, v{vG}
    """)
    for r in range(8):
        a(f"""
        v_lshlrev_b32 v{OB+2*r}, 16, v{BB_+r}
        v_and_b32 v{OB+2*r+1}, 0xffff0000, v{BB_+r}
        """)
    for r in range(16):
        a(f"v_mul_f32 v{OB+r}, v{OB+r}, v{vA1}")
    a("s_waitcnt lgkmcnt(8)")
    for r in range(8):
        a(f"v_pk_add_f32 {vr(AC+2*r,2)}, {vr(AC+2*r,2)}, {vr(AC+16+2*r,2)}")
    a("s_waitcnt lgkmcnt(0)")
    for r in range(8):
        a(f"v_pk_add_f32 {vr(AC+32+2*r,2)}, {vr(AC+32+2*r,2)}, {vr(AC+48+2*r,2)}")
    for r in range(8):
        a(f"v_pk_add_f32 {vr(AC+2*r,2)}, {vr(AC+2*r,2)}, {vr(AC+32+2*r,2)}")
    for r in range(16):
        a(f"v_fmac_f32 v{OB+r}, v{AC+r}, v{vA0}")
    for r in range(8):
        a(f"v_cvt_pk_bf16_f32 v{BB_+r}, v{OB+2*r}, v{OB+2*r+1}")
    a(f"""
    v_permlane32_swap_b32 v{BB_}, v{BB_+2}
    v_permlane32_swap_b32 v{BB_+1}, v{BB_+3}
    v_permlane32_swap_b32 v{BB_+4}, v{BB_+6}
    v_permlane32_swap_b32 v{BB_+5}, v{BB_+7}
    buffer_store_dwordx4 {vr(BB_)}, v{vOa}, {sr(SOUT)}, s49 offen
    buffer_store_dwordx4 {vr(BB_+4)}, v{vOa}, {sr(SOUT)}, s49 offen offset:32
    """)
    if fused:
        a(f"""
        v_mov_b32 v{vT}, 0
        v_lshlrev_b32 v{vT2}, 2, v0
        s_lshl_b32 s44, s2, 6
        s_add_u32 s44, s44, {WS_SYNC:#x}
        v_cmp_gt_u32 vcc, 16, v0
        s_and_b64 exec, vcc, exec
        s_cbranch_execz K3_NOCLR
        buffer_store_dword v{vT}, v{vT2}, {sr(SWS)}, s44 offen
        {f"s_add_u32 s44, s44, 0x8000" if opts.get("kfmod") in ("ki", "kj") else ""}
        {f"buffer_store_dword v{vT}, v{vT2}, {sr(SWS)}, s44 offen" if opts.get("kfmod") in ("ki", "kj") else ""}
        {f"s_add_u32 s44, s44, 0x4000" if opts.get("kfmod") == "kj" else ""}
        {f"buffer_store_dword v{vT}, v{vT2}, {sr(SWS)}, s44 offen" if opts.get("kfmod") == "kj" else ""}
        K3_NOCLR:
        """)
    if PROF[0]:
        stamp(a, 4)
        a("s_waitcnt vmcnt(0)")
        for i in range(5, 8):
            stamp(a, i)
        prof_out(a, 2, SWS, 3)
    a(f"""
    K3_END:
    s_endpgm
    K3_FB:
    """)
    mk_srd(a, SWD, 6, 1792 * 1024)
    a(f"""
    s_mul_i32 s44, s3, {28*16*1024}
    s_add_u32 s45, s44, 8192
    s_mul_i32 s46, s36, {224*1024}
    s_mul_i32 s47, s3, {28*1024}
    s_add_u32 s46, s46, s47
    s_add_u32 s46, s46, {WS_HF:#x}
    s_add_u32 s47, s46, {112*1024}
    s_lshl_b32 s48, s36, 8
    s_add_u32 s48, s48, {WS_G:#x}
    v_and_b32 v{vT}, 31, v2
    v_lshlrev_b32 v{vT}, 2, v{vT}
    s_waitcnt vmcnt(0)
    buffer_load_dword v{BB_}, v{vT}, {sr(SWS)}, s48 offen
    buffer_load_dword v{BB_+1}, v{vT}, {sr(SWS)}, s48 offen offset:128
    s_mov_b32 s50, 0
    """)
    for r in range(64):
        a(f"v_mov_b32 v{AB+r}, 0")
    a(f"""
    K3_FBL:
    s_mov_b32 m0, s43
    buffer_load_dwordx4 {vr(OB)}, v1, {sr(SWS)}, s46 offen
    buffer_load_dwordx4 v{vO}, {sr(SWD)}, s44 offen lds
    s_add_u32 m0, s43, 1024
    buffer_load_dwordx4 {vr(OB+4)}, v1, {sr(SWS)}, s47 offen
    buffer_load_dwordx4 v{vO}, {sr(SWD)}, s45 offen lds
    s_add_u32 s44, s44, 0x4000
    s_add_u32 s45, s45, 0x4000
    s_add_u32 s46, s46, 1024
    s_add_u32 s47, s47, 1024
    s_waitcnt vmcnt(0)
    ds_read_b64_tr_b16 {vr(W2,2)}, v{vA0}
    ds_read_b64_tr_b16 {vr(W2+2,2)}, v{vA0} offset:1024
    ds_read_b64_tr_b16 {vr(W2+4,2)}, v{vA1}
    ds_read_b64_tr_b16 {vr(W2+6,2)}, v{vA1} offset:1024
    s_waitcnt lgkmcnt(0)
    {MFMA} {vr(AB,16)}, {vr(W2)}, {vr(OB)}, {vr(AB,16)}
    {MFMA} {vr(AB+16,16)}, {vr(W2)}, {vr(OB+4)}, {vr(AB+16,16)}
    {MFMA} {vr(AB+32,16)}, {vr(W2+4)}, {vr(OB)}, {vr(AB+32,16)}
    {MFMA} {vr(AB+48,16)}, {vr(W2+4)}, {vr(OB+4)}, {vr(AB+48,16)}
    s_add_u32 s50, s50, 1
    s_cmp_lt_u32 s50, 28
    s_cbranch_scc1 K3_FBL
    v_lshlrev_b32 v{W2}, 16, v{BB_}
    v_and_b32 v{W2+1}, 0xffff0000, v{BB_}
    v_lshlrev_b32 v{W2+2}, 16, v{BB_+1}
    v_and_b32 v{W2+3}, 0xffff0000, v{BB_+1}
    """)
    for q in range(4):
        ru = q & 1
        for r in range(16):
            a(f"""
            v_mul_f32 v{AC+16*q+r}, v{AC+16*q+r}, v{W2+2*ru}
            v_fmac_f32 v{AC+16*q+r}, v{AB+16*q+r}, v{W2+2*ru+1}
            """)
    for r in range(8):
        a(f"v_mov_b32 v{BB_+r}, 0")
    a(f"""
    v_mov_b32 v{vG}, 0x3f80
    s_branch K3_RED
    """)
    if not fused:
        return
    Q, K_, V_, S_, P_, O_, C_, T_ = 164, 168, 172, 180, 196, 204, 220, 236
    a(f"""
    K3_AFB:
    s_mov_b32 s56, vcc_lo
    s_mov_b32 s57, 0
    s_mov_b32 s60, 0x0000ffff
    s_mov_b32 s61, 0x0000ffff
    s_waitcnt vmcnt(0)
    """)
    for r in range(8):
        a(f"v_mov_b32 v{V_+r}, 0x3f803f80")
    a(f"""
    K3_AFBU:
    s_bitcmp1_b32 s56, s57
    s_cbranch_scc0 K3_AFBN
    s_lshr_b32 s50, s57, 1
    s_lshl_b32 s51, s3, 3
    s_add_u32 s50, s50, s51
    s_and_b32 s51, s57, 1
    s_lshl_b32 s59, s36, 1
    s_add_u32 s51, s51, s59
    s_lshl_b32 s86, s50, 16
    s_lshl_b32 s87, s51, 10
    s_add_u32 s87, s87, s86
    buffer_load_dwordx4 {vr(Q)}, v1, {sr(SWS)}, s87 offen
    s_lshl_b32 s51, s51, 15
    s_lshl_b32 s50, s50, 10
    s_add_u32 s50, s50, s51
    s_add_u32 s50, s50, {WS_OF:#x}
    s_add_u32 s87, s86, {WS_KF:#x}
    s_mov_b32 s59, 0
    v_mov_b32 v{T_}, 0xff800000
    K3_AFB1:
    buffer_load_dwordx4 {vr(K_)}, v1, {sr(SWS)}, s87 offen
    s_add_u32 s87, s87, 1024
    s_waitcnt vmcnt(0)
    {MFMA} {vr(S_,16)}, {vr(K_)}, {vr(Q)}, 0
    """)
    for r in range(8):
        a(f"v_max3_f32 v{T_}, v{S_+2*r}, v{S_+2*r+1}, v{T_}")
    a(f"""
    s_add_u32 s59, s59, 1
    s_cmp_lt_u32 s59, 64
    s_cbranch_scc1 K3_AFB1
    v_mov_b32 v{T_+1}, v{T_}
    v_permlane32_swap_b32 v{T_}, v{T_+1}
    v_max_f32 v{T_}, v{T_}, v{T_+1}
    """)
    for r in range(16):
        a(f"v_mul_f32 v{C_+r}, -1.0, v{T_}")
    for r in range(16):
        a(f"v_mov_b32 v{O_+r}, 0")
    a(f"""
    s_add_u32 s87, s86, {WS_KF:#x}
    s_add_u32 s86, s86, {WS_VF:#x}
    s_mov_b32 s59, 0
    K3_AFB2:
    buffer_load_dwordx4 {vr(K_)}, v1, {sr(SWS)}, s87 offen
    s_mov_b64 exec, s[60:61]
    buffer_load_dwordx4 {vr(V_)}, v1, {sr(SWS)}, s86 offen
    buffer_load_dwordx4 {vr(V_+4)}, v1, {sr(SWS)}, s86 offen offset:256
    s_mov_b64 exec, -1
    s_add_u32 s87, s87, 1024
    s_add_u32 s86, s86, 1024
    s_waitcnt vmcnt(0)
    {MFMA} {vr(S_,16)}, {vr(K_)}, {vr(Q)}, {vr(C_,16)}
    """)
    for r in range(16):
        a(f"v_exp_f32 v{S_+r}, v{S_+r}")
    for r in range(8):
        a(f"v_cvt_pk_bf16_f32 v{P_+r}, v{S_+2*r}, v{S_+2*r+1}")
    a(f"""
    {MFMA} {vr(O_,16)}, {vr(V_)}, {vr(P_)}, {vr(O_,16)}
    {MFMA} {vr(O_,16)}, {vr(V_+4)}, {vr(P_+4)}, {vr(O_,16)}
    s_add_u32 s59, s59, 1
    s_cmp_lt_u32 s59, 64
    s_nop 7
    s_nop 7
    s_cbranch_scc1 K3_AFB2
    v_rcp_f32 v{T_}, v{O_+8}
    """)
    for r in range(8):
        a(f"v_mul_f32 v{O_+r}, v{O_+r}, v{T_}")
    for r in range(4):
        a(f"v_cvt_pk_bf16_f32 v{P_+r}, v{O_+2*r}, v{O_+2*r+1}")
    a(f"""
    buffer_store_dwordx4 {vr(P_)}, v1, {sr(SWS)}, s50 offen sc0 sc1
    K3_AFBN:
    s_add_u32 s57, s57, 1
    s_cmp_lt_u32 s57, 16
    s_cbranch_scc1 K3_AFBU
    s_waitcnt vmcnt(0)
    s_add_u32 s59, s58, 0x8000
    """)
    for i in range(8):
        a(f"""
        buffer_load_dwordx4 {vr(OB+8*i)}, v1, {sr(SWS)}, s58 offen offset:{(i&3)*1024} sc0 sc1
        buffer_load_dwordx4 {vr(OB+8*i+4)}, v1, {sr(SWS)}, s59 offen offset:{(i&3)*1024} sc0 sc1
        """)
        if i == 3:
            a("s_add_u32 s58, s58, 4096\n s_add_u32 s59, s59, 4096")
    a("""
    s_waitcnt vmcnt(0)
    s_branch K3_AOK
    """)
```
